```python
import torch

def _softmax(x, axis=-1):
    return torch.softmax(x, dim=axis)
def _gelu(x):
    return torch.nn.functional.gelu(x, approximate="tanh")
def _silu(x):
    return torch.nn.functional.silu(x)
def _sigmoid(x):
    return torch.sigmoid(x)
def _layernorm(x, axis=-1, eps=1e-5):
    m = x.mean(dim=axis, keepdim=True)
    v = x.var(dim=axis, keepdim=True, unbiased=False)
    return (x - m) / torch.sqrt(v + eps)
def _scatter_add(tgt, idx, src, axis=0):
    return tgt.clone().index_add_(axis, idx, src)
def _segment_sum(src, seg, n):
    out = torch.zeros((n,) + src.shape[1:], dtype=src.dtype)
    return out.index_add_(0, seg, src)
def _pad(x, pw):
    flat = tuple(v for pair in reversed(pw) for v in pair)
    return torch.nn.functional.pad(x, flat)

kernel_name = 'standalone__swiglu_ffn__sampling'

def setup_inputs():

    _w = (lambda a: (lambda t: t.to(torch.bfloat16) if t.is_floating_point() else t)(torch.as_tensor(a)))
    B, S, D, F = 16, 16, 1024, 3584
    return {
        "x": _w((lambda *s: torch.randn(*s, dtype=torch.bfloat16) * 0.05)(B, S, D)),
        "w_gate": _w((lambda *s: torch.randn(*s, dtype=torch.bfloat16) * 0.05)(D, F)),
        "w_up": _w((lambda *s: torch.randn(*s, dtype=torch.bfloat16) * 0.05)(D, F)),
        "w_down": _w((lambda *s: torch.randn(*s, dtype=torch.bfloat16) * 0.05)(F, D)),
    }

def reference(x, w_gate, w_up, w_down):
    g = _silu(x @ w_gate)
    u = x @ w_up
    return (g * u) @ w_down
```

```python
import sys

OUT = sys.argv[1] if len(sys.argv) > 1 else "standalone__swiglu_ffn__sampling.s"

M, D, F = 256, 1024, 3584
X_BYTES = M * D * 2
W_BYTES = D * F * 2
H_BYTES = M * F * 2
O_BYTES = M * D * 2

L = []


def e(s=""):
    L.append(s)


def srd(dst, base, nbytes):
    e(f"  s_mov_b32 s{dst}, s{base}")
    e(f"  s_and_b32 s{dst+1}, s{base+1}, 0xffff")
    e(f"  s_mov_b32 s{dst+2}, {nbytes}")
    e(f"  s_mov_b32 s{dst+3}, 0x00020000")


HEADER = """; Kernarg layout for this problem (56 bytes, ptrs only, base s[0:1]):
; @launch kernel=ffn_up_kernel grid=(224,1,1) block=(256,1,1) lds=%d
; @launch kernel=ffn_down_kernel grid=(256,1,1) block=(256,1,1) lds=%d
.amdgcn_target "amdgcn-amd-amdhsa--gfx950"
.text
"""

NS1 = 6
ST1 = 24576
LDS1 = NS1 * ST1
NSTAGE1 = D // 64


def k1():
    e(".globl ffn_up_kernel")
    e(".p2align 8")
    e(".type ffn_up_kernel,@function")
    e("ffn_up_kernel:")
    e("  s_cmp_ge_u32 s2, 224")
    e("  s_cbranch_scc1 L_k1_end")
    e("  s_load_dwordx4 s[24:27], s[0:1], 0")
    e("  s_load_dwordx2 s[28:29], s[0:1], 16")
    e("  s_load_dwordx2 s[30:31], s[0:1], 48")
    e("  s_and_b32 s32, s2, 7")
    e("  s_lshr_b32 s33, s2, 3")
    e("  s_and_b32 s34, s33, 3")
    e("  s_lshr_b32 s35, s2, 5")
    e("  s_lshl_b32 s36, s35, 3")
    e("  s_add_u32 s36, s36, s32")
    e("  s_lshl_b32 s37, s34, 6")
    e("  s_lshl_b32 s38, s36, 6")
    e("  v_and_b32 v1, 63, v0")
    e("  v_lshrrev_b32 v2, 6, v0")
    e("  s_nop 0")
    e("  v_readfirstlane_b32 s39, v2")
    e("  s_waitcnt lgkmcnt(0)")
    srd(4, 24, X_BYTES)
    srd(8, 26, W_BYTES)
    srd(12, 28, W_BYTES)
    srd(16, 30, H_BYTES)
    e("  v_lshrrev_b32 v3, 3, v1")
    e("  v_and_b32 v4, 7, v1")
    e("  s_lshl_b32 s40, s39, 4")
    e("  s_add_u32 s41, s40, s37")
    e("  v_add_u32 v5, s41, v3")
    e("  v_lshlrev_b32 v5, 11, v5")
    e("  v_xor_b32 v6, v4, v3")
    e("  v_lshlrev_b32 v6, 4, v6")
    e("  v_add_u32 v10, v5, v6")
    e("  v_add_u32 v11, 16384, v10")
    e("  v_add_u32 v5, s40, v3")
    e("  s_movk_i32 s42, 7168")
    e("  v_mul_lo_u32 v5, v5, s42")
    e("  s_lshl_b32 s43, s38, 1")
    e("  v_add_u32 v5, s43, v5")
    e("  v_and_b32 v6, 3, v3")
    e("  v_xor_b32 v7, v4, v6")
    e("  v_lshlrev_b32 v7, 4, v7")
    e("  v_add_u32 v12, v5, v7")
    e("  v_xor_b32 v7, 4, v6")
    e("  v_xor_b32 v7, v4, v7")
    e("  v_lshlrev_b32 v7, 4, v7")
    e("  v_add_u32 v13, v5, v7")
    e("  v_add_u32 v13, 57344, v13")
    e("  s_lshl_b32 s44, s39, 11")
    e("  s_lshr_b32 s45, s39, 1")
    e("  s_and_b32 s46, s39, 1")
    e("  v_and_b32 v5, 15, v1")
    e("  s_lshl_b32 s47, s45, 5")
    e("  v_add_u32 v5, s47, v5")
    e("  v_lshlrev_b32 v5, 7, v5")
    e("  v_lshrrev_b32 v6, 4, v1")
    e("  v_xor_b32 v7, v6, v4")
    e("  v_lshlrev_b32 v8, 4, v7")
    e("  v_add_u32 v14, v5, v8")
    e("  v_xor_b32 v7, 4, v7")
    e("  v_lshlrev_b32 v8, 4, v7")
    e("  v_add_u32 v15, v5, v8")
    e("  v_lshrrev_b32 v7, 2, v1")
    e("  v_and_b32 v7, 3, v7")
    e("  v_lshlrev_b32 v8, 3, v6")
    e("  v_add_u32 v8, v8, v7")
    e("  v_lshlrev_b32 v8, 7, v8")
    e("  v_and_b32 v9, 1, v1")
    e("  v_lshlrev_b32 v9, 3, v9")
    e("  v_add_u32 v8, v8, v9")
    e("  v_add_u32 v8, 8192, v8")
    e("  v_and_b32 v9, 1, v6")
    e("  v_lshlrev_b32 v9, 2, v9")
    e("  v_or_b32 v9, v9, v7")
    e("  v_lshrrev_b32 v5, 1, v1")
    e("  v_and_b32 v5, 1, v5")
    e("  s_lshl_b32 s47, s46, 2")
    e("  v_add_u32 v5, s47, v5")
    e("  v_xor_b32 v7, v5, v9")
    e("  v_lshlrev_b32 v7, 4, v7")
    e("  v_add_u32 v16, v8, v7")
    e("  v_add_u32 v5, 2, v5")
    e("  v_xor_b32 v7, v5, v9")
    e("  v_lshlrev_b32 v7, 4, v7")
    e("  v_add_u32 v17, v8, v7")
    for i in range(4):
        e(f"  v_add_u32 v{18+i}, 49152, v{14+i}")
        e(f"  v_add_u32 v{22+i}, 98304, v{14+i}")
    for i in range(32):
        e(f"  v_mov_b32 v{32+i}, 0")

    def acc(mat, mi, ni):
        b = 32 + ((mat * 2 + mi) * 2 + ni) * 4
        return f"v[{b}:{b+3}]"

    def xf(ks, mi):
        b = 64 + ks * 24 + mi * 4
        return b

    def wf(ks, mat, ni):
        b = 64 + ks * 24 + 8 + (mat * 2 + ni) * 4
        return b

    def issue(stage):
        slot = stage % NS1
        sb = slot * ST1
        e(f"  s_mov_b32 s48, {stage*128}")
        e(f"  s_mov_b32 s49, {stage*64*7168}")
        for j in range(2):
            e(f"  s_add_u32 m0, s44, {sb + j*1024}")
            e("  s_nop 0")
            e(f"  buffer_load_dwordx4 v{10+j}, s[4:7], s48 offen lds")
        for mat in range(2):
            for j in range(2):
                e(f"  s_add_u32 m0, s44, {sb + 8192 + mat*8192 + j*1024}")
                e("  s_nop 0")
                e(f"  buffer_load_dwordx4 v{12+j}, s[{8+4*mat}:{11+4*mat}], s49 offen lds")

    for st in range(NS1 - 1):
        issue(st)
    for s in range(NSTAGE1):
        slot = s % NS1
        last_issued = min(s + NS1 - 2, NSTAGE1 - 1)
        n_after = (last_issued - s) * 6
        e(f"  s_waitcnt vmcnt({n_after})")
        e("  s_barrier")
        if s + NS1 - 1 < NSTAGE1:
            issue(s + NS1 - 1)
        grp = slot // 2
        ob = (slot % 2) * ST1
        vx = [14 + 4 * grp, 15 + 4 * grp]
        vw = [16 + 4 * grp, 17 + 4 * grp]
        for ks in range(2):
            for mi in range(2):
                b = xf(ks, mi)
                e(f"  ds_read_b128 v[{b}:{b+3}], v{vx[ks]} offset:{ob + mi*2048}")
            for mat in range(2):
                for ni in range(2):
                    b = wf(ks, mat, ni)
                    for hf in range(2):
                        off = ob + mat * 8192 + ks * 4096 + hf * 512
                        e(f"  ds_read_b64_tr_b16 v[{b+2*hf}:{b+2*hf+1}], v{vw[ni]} offset:{off}")
        for ks in range(2):
            e(f"  s_waitcnt lgkmcnt({10 if ks == 0 else 0})")
            for mat in range(2):
                for ni in range(2):
                    for mi in range(2):
                        w = wf(ks, mat, ni)
                        x = xf(ks, mi)
                        a = acc(mat, mi, ni)
                        e(f"  v_mfma_f32_16x16x32_bf16 {a}, v[{w}:{w+3}], v[{x}:{x+3}], {a}")
    e("  s_nop 7")
    e("  s_nop 7")
    e("  v_and_b32 v5, 15, v1")
    e("  s_lshl_b32 s47, s45, 5")
    e("  s_add_u32 s47, s47, s37")
    e("  v_add_u32 v5, s47, v5")
    e("  v_mul_lo_u32 v5, v5, s42")
    e("  v_lshrrev_b32 v6, 4, v1")
    e("  v_lshlrev_b32 v6, 3, v6")
    e("  s_lshl_b32 s47, s46, 6")
    e("  s_add_u32 s47, s47, s43")
    e("  v_add_u32 v6, s47, v6")
    e("  v_add_u32 v26, v5, v6")
    e("  v_add_u32 v27, 114688, v26")
    e("  s_mov_b32 s50, 0xbfb8aa3b")
    e("  s_mov_b32 s51, 0xffff0000")
    for mi in range(2):
        for ni in range(2):
            g = 32 + ((0 * 2 + mi) * 2 + ni) * 4
            u = 32 + ((1 * 2 + mi) * 2 + ni) * 4
            for p in range(2):
                e(f"  v_cvt_pk_bf16_f32 v64, v{g+2*p}, v{g+2*p+1}")
                e(f"  v_cvt_pk_bf16_f32 v65, v{u+2*p}, v{u+2*p+1}")
                e("  v_lshlrev_b32 v66, 16, v64")
                e("  v_and_b32 v67, s51, v64")
                e("  v_lshlrev_b32 v68, 16, v65")
                e("  v_and_b32 v69, s51, v65")
                e("  v_mul_f32 v70, s50, v66")
                e("  v_mul_f32 v71, s50, v67")
                e("  v_exp_f32 v70, v70")
                e("  v_exp_f32 v71, v71")
                e("  s_nop 0")
                e("  v_add_f32 v70, 1.0, v70")
                e("  v_add_f32 v71, 1.0, v71")
                e("  v_rcp_f32 v70, v70")
                e("  v_rcp_f32 v71, v71")
                e("  s_nop 0")
                e("  v_mul_f32 v70, v66, v70")
                e("  v_mul_f32 v71, v67, v71")
                e("  v_cvt_pk_bf16_f32 v72, v70, v71")
                e("  v_lshlrev_b32 v70, 16, v72")
                e("  v_and_b32 v71, s51, v72")
                e("  v_mul_f32 v70, v70, v68")
                e("  v_mul_f32 v71, v71, v69")
                e(f"  v_cvt_pk_bf16_f32 v{74+p}, v70, v71")
            e(f"  buffer_store_dwordx2 v[74:75], v{26+mi}, s[16:19], 0 offen offset:{ni*32}")
            e("  s_nop 1")
    e("L_k1_end:")
    e("  s_endpgm")


NS2 = 5
ST2 = 8192
WREG2 = NS2 * ST2
LDS2 = 4 * WREG2
NSTAGE2 = 896 // 64


def k2():
    e(".globl ffn_down_kernel")
    e(".p2align 8")
    e(".type ffn_down_kernel,@function")
    e("ffn_down_kernel:")
    e("  s_cmp_ge_u32 s2, 256")
    e("  s_cbranch_scc1 L_k2_end")
    e("  s_load_dwordx2 s[24:25], s[0:1], 24")
    e("  s_load_dwordx2 s[26:27], s[0:1], 32")
    e("  s_load_dwordx2 s[28:29], s[0:1], 48")
    e("  s_and_b32 s32, s2, 7")
    e("  s_lshr_b32 s33, s2, 3")
    e("  s_lshr_b32 s34, s33, 2")
    e("  s_and_b32 s35, s33, 3")
    e("  s_lshl_b32 s36, s32, 2")
    e("  s_add_u32 s36, s36, s35")
    e("  s_lshl_b32 s37, s34, 5")
    e("  s_lshl_b32 s38, s36, 5")
    e("  v_and_b32 v1, 63, v0")
    e("  v_lshrrev_b32 v2, 6, v0")
    e("  s_nop 0")
    e("  v_readfirstlane_b32 s39, v2")
    e("  s_waitcnt lgkmcnt(0)")
    srd(4, 28, H_BYTES)
    srd(8, 24, W_BYTES)
    srd(16, 26, O_BYTES)
    e("  s_mul_i32 s40, s39, 896")
    e("  v_lshrrev_b32 v3, 3, v1")
    e("  v_and_b32 v4, 7, v1")
    e("  v_add_u32 v5, s37, v3")
    e("  s_movk_i32 s42, 7168")
    e("  v_mul_lo_u32 v5, v5, s42")
    e("  s_lshl_b32 s41, s40, 1")
    e("  v_add_u32 v5, s41, v5")
    e("  v_xor_b32 v6, v4, v3")
    e("  v_lshlrev_b32 v6, 4, v6")
    e("  v_add_u32 v10, v5, v6")
    e("  v_lshrrev_b32 v5, 2, v1")
    e("  v_add_u32 v5, s40, v5")
    e("  v_lshlrev_b32 v5, 11, v5")
    e("  s_lshl_b32 s43, s38, 1")
    e("  v_add_u32 v5, s43, v5")
    e("  v_and_b32 v6, 3, v1")
    e("  v_lshrrev_b32 v7, 5, v1")
    e("  v_lshlrev_b32 v7, 1, v7")
    e("  v_xor_b32 v6, v6, v7")
    e("  v_lshlrev_b32 v6, 4, v6")
    e("  v_add_u32 v11, v5, v6")
    e(f"  s_mul_i32 s44, s39, {WREG2}")
    e("  v_and_b32 v5, 15, v1")
    e("  v_lshlrev_b32 v5, 7, v5")
    e("  v_add_u32 v5, s44, v5")
    e("  v_lshrrev_b32 v6, 4, v1")
    e("  v_xor_b32 v7, v6, v4")
    e("  v_lshlrev_b32 v8, 4, v7")
    e("  v_add_u32 v14, v5, v8")
    e("  v_xor_b32 v7, 4, v7")
    e("  v_lshlrev_b32 v8, 4, v7")
    e("  v_add_u32 v15, v5, v8")
    e("  v_lshrrev_b32 v7, 2, v1")
    e("  v_and_b32 v7, 3, v7")
    e("  v_lshlrev_b32 v8, 3, v6")
    e("  v_add_u32 v8, v8, v7")
    e("  v_lshlrev_b32 v8, 6, v8")
    e("  v_and_b32 v9, 1, v1")
    e("  v_lshlrev_b32 v9, 3, v9")
    e("  v_add_u32 v8, v8, v9")
    e("  v_add_u32 v8, 4096, v8")
    e("  v_add_u32 v8, s44, v8")
    e("  v_and_b32 v9, 1, v6")
    e("  v_lshlrev_b32 v9, 1, v9")
    e("  v_lshrrev_b32 v5, 1, v1")
    e("  v_and_b32 v5, 1, v5")
    e("  v_xor_b32 v7, v5, v9")
    e("  v_lshlrev_b32 v7, 4, v7")
    e("  v_add_u32 v16, v8, v7")
    e("  v_add_u32 v5, 2, v5")
    e("  v_xor_b32 v7, v5, v9")
    e("  v_lshlrev_b32 v7, 4, v7")
    e("  v_add_u32 v17, v8, v7")
    for i in range(16):
        e(f"  v_mov_b32 v{32+i}, 0")

    def acc(mi, ni):
        b = 32 + (mi * 2 + ni) * 4
        return b

    def xf(ks, mi):
        return 64 + ks * 16 + mi * 4

    def wf(ks, ni):
        return 64 + ks * 16 + 8 + ni * 4

    def issue(stage):
        sb = (stage % NS2) * ST2
        for i in range(4):
            e(f"  s_mov_b32 s48, {stage*128 + i*8*7168}")
            e(f"  s_add_u32 m0, s44, {sb + i*1024}")
            e("  s_nop 0")
            e("  buffer_load_dwordx4 v10, s[4:7], s48 offen lds")
        for i in range(4):
            e(f"  s_mov_b32 s48, {(stage*64 + 16*i)*2048}")
            e(f"  s_add_u32 m0, s44, {sb + 4096 + i*1024}")
            e("  s_nop 0")
            e("  buffer_load_dwordx4 v11, s[8:11], s48 offen lds")

    for st in range(NS2 - 1):
        issue(st)
    for s in range(NSTAGE2):
        if s + NS2 - 1 < NSTAGE2:
            issue(s + NS2 - 1)
        last_issued = min(s + NS2 - 1, NSTAGE2 - 1)
        e(f"  s_waitcnt vmcnt({(last_issued - s) * 8})")
        sb = (s % NS2) * ST2
        for ks in range(2):
            for mi in range(2):
                b = xf(ks, mi)
                e(f"  ds_read_b128 v[{b}:{b+3}], v{14+ks} offset:{sb + mi*2048}")
            for ni in range(2):
                b = wf(ks, ni)
                for hf in range(2):
                    e(f"  ds_read_b64_tr_b16 v[{b+2*hf}:{b+2*hf+1}], v{16+ni} offset:{sb + ks*2048 + hf*256}")
        for ks in range(2):
            e(f"  s_waitcnt lgkmcnt({6 if ks == 0 else 0})")
            for ni in range(2):
                for mi in range(2):
                    a = acc(mi, ni)
                    w = wf(ks, ni)
                    x = xf(ks, mi)
                    e(f"  v_mfma_f32_16x16x32_bf16 v[{a}:{a+3}], v[{w}:{w+3}], v[{x}:{x+3}], v[{a}:{a+3}]")
    e("  s_nop 7")
    e("  s_nop 7")
    e("  v_lshlrev_b32 v18, 4, v1")
    e("  v_add_u32 v19, s44, v18")
    for t in range(4):
        a = 32 + t * 4
        e(f"  ds_write_b128 v19, v[{a}:{a+3}] offset:{t*1024}")
    e("  s_waitcnt lgkmcnt(0)")
    e("  s_barrier")
    e("  s_lshl_b32 s45, s39, 10")
    e("  v_add_u32 v19, s45, v18")
    for r in range(2):
        e(f"  ds_read_b128 v[{64+4*r}:{67+4*r}], v19 offset:{r*WREG2}")
    e(f"  v_add_u32 v20, {2*WREG2}, v19")
    for r in range(2):
        e(f"  ds_read_b128 v[{72+4*r}:{75+4*r}], v20 offset:{r*WREG2}")
    e("  s_waitcnt lgkmcnt(0)")
    for i in range(4):
        e(f"  v_add_f32 v{64+i}, v{64+i}, v{68+i}")
        e(f"  v_add_f32 v{72+i}, v{72+i}, v{76+i}")
    for i in range(4):
        e(f"  v_add_f32 v{64+i}, v{64+i}, v{72+i}")
    e("  v_cvt_pk_bf16_f32 v80, v64, v65")
    e("  v_cvt_pk_bf16_f32 v81, v66, v67")
    e("  s_lshr_b32 s45, s39, 1")
    e("  s_and_b32 s46, s39, 1")
    e("  s_lshl_b32 s45, s45, 4")
    e("  s_add_u32 s45, s45, s37")
    e("  v_and_b32 v5, 15, v1")
    e("  v_add_u32 v5, s45, v5")
    e("  v_lshlrev_b32 v5, 11, v5")
    e("  s_lshl_b32 s46, s46, 5")
    e("  s_add_u32 s46, s46, s43")
    e("  v_lshrrev_b32 v6, 4, v1")
    e("  v_lshlrev_b32 v6, 3, v6")
    e("  v_add_u32 v6, s46, v6")
    e("  v_add_u32 v5, v5, v6")
    e("  buffer_store_dwordx2 v[80:81], v5, s[16:19], 0 offen")
    e("L_k2_end:")
    e("  s_endpgm")


def kd(name, nv, ns):
    acc_off = ((nv + 3) // 4) * 4
    e(f".amdhsa_kernel {name}")
    e(f"  .amdhsa_next_free_vgpr {nv}")
    e(f"  .amdhsa_next_free_sgpr {ns}")
    e(f"  .amdhsa_accum_offset {acc_off}")
    e("  .amdhsa_group_segment_fixed_size 0")
    e("  .amdhsa_kernarg_size 56")
    e("  .amdhsa_user_sgpr_count 2")
    e("  .amdhsa_user_sgpr_kernarg_segment_ptr 1")
    e("  .amdhsa_system_sgpr_workgroup_id_x 1")
    e(".end_amdhsa_kernel")


L.append(HEADER % (LDS1, LDS2))
k1()
k2()
e('.section .rodata,"a"')
e(".p2align 6")
kd("ffn_up_kernel", 112, 64)
e(".p2align 6")
kd("ffn_down_kernel", 96, 64)
open(OUT, "w").write("\n".join(L) + "\n")
print("wrote", OUT, len(L), "lines")
```

```python
import sys, os

OUT = sys.argv[1] if len(sys.argv) > 1 else "standalone__swiglu_ffn__sampling.s"


def env(name, dflt):
    return int(os.environ.get(name, str(dflt)))


STAMP = env("STAMP", 0)
WGSEL1 = env("WGSEL1", 0)
WGSEL2 = env("WGSEL2", 1)
ROT = env("ROT", 1)
LA1 = env("LA1", 5)
LA2 = env("LA2", 5)
LI1 = env("LI1", 3)
LI2 = env("LI2", 3)
NTS1 = env("NTS1", 4)
NTS2 = env("NTS2", 0)
PFX = env("PFX", 1)
PFD = env("PFD", 1)
PFD_STAGE = env("PFD_STAGE", 5)
PFD_NT = env("PFD_NT", 1)
PFH = env("PFH", 0)

M, D, F = 256, 1024, 3584
X_BYTES = M * D * 2
W_BYTES = D * F * 2
H_BYTES = M * F * 2
O_BYTES = M * D * 2

L = []
NST = [0]
VM = []


def e(s=""):
    L.append(s)


def vm_issue(tag):
    VM.append(tag)


def vm_wait_for(tag):
    last = max(i for i, t in enumerate(VM) if t == tag)
    n = len(VM) - 1 - last
    assert n <= 63
    return n


def stamp():
    if STAMP:
        i = NST[0]
        NST[0] += 1
        e(f"  s_memtime s[{64+2*i}:{65+2*i}]")
        if i == 0:
            e("  s_memrealtime s[96:97]")


def stamp_out(wgsel):
    if not STAMP:
        return
    n = NST[0]
    NST[0] = 0
    e("  s_memrealtime s[98:99]")
    e("  s_waitcnt lgkmcnt(0) vmcnt(0)")
    e(f"  s_cmp_lg_u32 s2, {wgsel}")
    e(f"  s_cbranch_scc1 L_nostamp_{wgsel}")
    e("  s_cmp_lg_u32 s39, 0")
    e(f"  s_cbranch_scc1 L_nostamp_{wgsel}")
    e("  s_load_dwordx2 s[56:57], s[0:1], 40")
    e("  s_waitcnt lgkmcnt(0)")
    e("  s_mov_b32 s58, 256")
    e("  s_mov_b32 s59, 0x00020000")
    e("  s_and_b32 s57, s57, 0xffff")
    e("  v_mov_b32 v240, 0")
    for i in range(1, n):
        e(f"  s_sub_u32 s62, s{64+2*i}, s64")
        e("  v_mov_b32 v241, s62")
        e(f"  buffer_store_dword v241, v240, s[56:59], 0 offen offset:{4*(i-1)}")
    e("  s_sub_u32 s62, s98, s96")
    e("  v_mov_b32 v241, s62")
    e("  buffer_store_dword v241, v240, s[56:59], 0 offen offset:60")
    e(f"L_nostamp_{wgsel}:")


def capture(fn, *args):
    save = len(L)
    fn(*args)
    lines = L[save:]
    del L[save:]
    return lines


def split_groups(lines, key):
    groups, cur = [], []
    for ln in lines:
        cur.append(ln)
        if key in ln:
            groups.append(cur)
            cur = []
    if cur:
        groups.append(cur)
    return groups


def interleave(mfmas, fillers):
    n = len(mfmas)
    nf = len(fillers)
    fi = 0
    for i, m in enumerate(mfmas):
        e(m)
        want = ((i + 1) * nf + n - 1) // n
        while fi < want and fi < nf:
            for ln in fillers[fi]:
                e(ln)
            fi += 1
    while fi < nf:
        for ln in fillers[fi]:
            e(ln)
        fi += 1


def merge(a, b):
    out = []
    ia = ib = 0
    na, nb = len(a), len(b)
    while ia < na or ib < nb:
        if ib >= nb or (ia < na and ia * nb <= ib * na):
            out.append(a[ia]); ia += 1
        else:
            out.append(b[ib]); ib += 1
    return out


def srd(dst, base, nbytes):
    e(f"  s_mov_b32 s{dst}, s{base}")
    e(f"  s_and_b32 s{dst+1}, s{base+1}, 0xffff")
    e(f"  s_mov_b32 s{dst+2}, {nbytes}")
    e(f"  s_mov_b32 s{dst+3}, 0x00020000")


HEADER = """; Kernarg layout for this problem (56 bytes, ptrs only, base s[0:1]):
; @launch kernel=ffn_up_kernel grid=(224,1,1) block=(256,1,1) lds=%d
; @launch kernel=ffn_down_kernel grid=(256,1,1) block=(256,1,1) lds=%d
.amdgcn_target "amdgcn-amd-amdhsa--gfx950"
.text
"""

NS1 = 6
ST1 = 24576
LDS1 = NS1 * ST1
NSTAGE1 = D // 64


def k1():
    del VM[:]
    e(".globl ffn_up_kernel")
    e(".p2align 8")
    e(".type ffn_up_kernel,@function")
    e("ffn_up_kernel:")
    stamp()
    e("  s_cmp_ge_u32 s2, 224")
    e("  s_cbranch_scc1 L_k1_end")
    e("  s_load_dwordx4 s[24:27], s[0:1], 0")
    e("  s_load_dwordx4 s[28:31], s[0:1], 16")
    e("  s_load_dwordx2 s[22:23], s[0:1], 48")
    e("  s_and_b32 s32, s2, 7")
    e("  s_lshr_b32 s33, s2, 3")
    e("  s_and_b32 s34, s33, 3")
    e("  s_lshr_b32 s35, s2, 5")
    e("  s_lshl_b32 s36, s35, 3")
    e("  s_add_u32 s36, s36, s32")
    e("  s_lshl_b32 s52, s34, 2")
    if not ROT:
        e("  s_mov_b32 s52, 0")
    e("  s_lshl_b32 s37, s34, 6")
    e("  s_lshl_b32 s38, s36, 6")
    e("  v_and_b32 v1, 63, v0")
    e("  v_lshrrev_b32 v2, 6, v0")
    e("  v_lshrrev_b32 v3, 3, v1")
    e("  v_readfirstlane_b32 s39, v2")
    e("  v_and_b32 v4, 7, v1")
    e("  s_lshl_b32 s40, s39, 4")
    e("  s_add_u32 s41, s40, s37")
    e("  v_add_u32 v5, s41, v3")
    e("  v_lshlrev_b32 v5, 11, v5")
    e("  v_xor_b32 v6, v4, v3")
    e("  v_lshlrev_b32 v6, 4, v6")
    e("  v_add_u32 v10, v5, v6")
    e("  v_add_u32 v11, 16384, v10")
    e("  v_add_u32 v5, s40, v3")
    e("  s_movk_i32 s42, 7168")
    e("  v_mul_lo_u32 v5, v5, s42")
    e("  s_lshl_b32 s43, s38, 1")
    e("  v_add_u32 v5, s43, v5")
    e("  v_and_b32 v6, 3, v3")
    e("  v_xor_b32 v7, v4, v6")
    e("  v_lshlrev_b32 v7, 4, v7")
    e("  v_add_u32 v12, v5, v7")
    e("  v_xor_b32 v7, 4, v6")
    e("  v_xor_b32 v7, v4, v7")
    e("  v_lshlrev_b32 v7, 4, v7")
    e("  v_add_u32 v13, v5, v7")
    e("  v_add_u32 v13, 57344, v13")
    e("  s_lshl_b32 s44, s39, 11")
    e("  s_lshl_b32 s45, s33, 2")
    e("  s_add_u32 s45, s45, s39")
    e("  s_lshl_b32 s46, s45, 13")
    e("  v_lshlrev_b32 v5, 7, v1")
    e("  v_add_u32 v28, s46, v5")
    e("  s_lshl_b32 s46, s45, 5")
    e("  v_lshrrev_b32 v5, 1, v1")
    e("  v_add_u32 v5, s46, v5")
    e("  v_lshlrev_b32 v5, 11, v5")
    e("  v_and_b32 v6, 1, v1")
    e("  v_lshlrev_b32 v6, 7, v6")
    e("  v_add_u32 v5, v5, v6")
    e("  s_lshl_b32 s46, s32, 8")
    e("  v_add_u32 v29, s46, v5")
    e("  s_waitcnt lgkmcnt(0)")
    srd(4, 24, X_BYTES)
    srd(8, 26, W_BYTES)
    srd(12, 28, W_BYTES)

    def issue(stage):
        slot = stage % NS1
        sb = slot * ST1
        e(f"  s_add_u32 s53, s52, {stage}")
        e("  s_and_b32 s53, s53, 15")
        e("  s_lshl_b32 s48, s53, 7")
        e(f"  s_mul_i32 s49, s53, {64*7168}")
        nt = " nt" if stage < NTS1 else ""
        for mat in range(2):
            for j in range(2):
                e(f"  s_add_u32 m0, s44, {sb + 8192 + mat*8192 + j*1024}")
                e("  s_nop 0")
                e(f"  buffer_load_dwordx4 v{12+j}, s[{8+4*mat}:{11+4*mat}], s49 offen{nt} lds")
                vm_issue(("st", stage))
        for j in range(2):
            e(f"  s_add_u32 m0, s44, {sb + j*1024}")
            e("  s_nop 0")
            e(f"  buffer_load_dwordx4 v{10+j}, s[4:7], s48 offen lds")
            vm_issue(("st", stage))

    stamp()
    if PFX:
        e("  buffer_load_dword v30, v28, s[4:7], 0 offen")
        vm_issue("pf")
    issue(0)
    srd(16, 22, H_BYTES)
    srd(24, 30, W_BYTES)
    e("  s_lshr_b32 s45, s39, 1")
    e("  s_and_b32 s46, s39, 1")
    e("  v_and_b32 v5, 15, v1")
    e("  s_lshl_b32 s47, s45, 5")
    e("  v_add_u32 v5, s47, v5")
    e("  v_lshlrev_b32 v5, 7, v5")
    e("  v_lshrrev_b32 v6, 4, v1")
    e("  v_xor_b32 v7, v6, v4")
    e("  v_lshlrev_b32 v8, 4, v7")
    e("  v_add_u32 v14, v5, v8")
    e("  v_xor_b32 v7, 4, v7")
    e("  v_lshlrev_b32 v8, 4, v7")
    e("  v_add_u32 v15, v5, v8")
    e("  v_lshrrev_b32 v7, 2, v1")
    e("  v_and_b32 v7, 3, v7")
    e("  v_lshlrev_b32 v8, 3, v6")
    e("  v_add_u32 v8, v8, v7")
    e("  v_lshlrev_b32 v8, 7, v8")
    e("  v_and_b32 v9, 1, v1")
    e("  v_lshlrev_b32 v9, 3, v9")
    e("  v_add_u32 v8, v8, v9")
    e("  v_add_u32 v8, 8192, v8")
    e("  v_and_b32 v9, 1, v6")
    e("  v_lshlrev_b32 v9, 2, v9")
    e("  v_or_b32 v9, v9, v7")
    e("  v_lshrrev_b32 v5, 1, v1")
    e("  v_and_b32 v5, 1, v5")
    e("  s_lshl_b32 s47, s46, 2")
    e("  v_add_u32 v5, s47, v5")
    e("  v_xor_b32 v7, v5, v9")
    e("  v_lshlrev_b32 v7, 4, v7")
    e("  v_add_u32 v16, v8, v7")
    e("  v_add_u32 v5, 2, v5")
    e("  v_xor_b32 v7, v5, v9")
    e("  v_lshlrev_b32 v7, 4, v7")
    e("  v_add_u32 v17, v8, v7")
    for i in range(4):
        e(f"  v_add_u32 v{18+i}, 49152, v{14+i}")
        e(f"  v_add_u32 v{22+i}, 98304, v{14+i}")
    for i in range(32):
        e(f"  v_mov_b32 v{32+i}, 0")

    def acc(mat, mi, ni):
        b = 32 + ((mat * 2 + mi) * 2 + ni) * 4
        return f"v[{b}:{b+3}]"

    def xf(fs, ks, mi):
        return 64 + fs * 48 + ks * 24 + mi * 4

    def wf(fs, ks, mat, ni):
        return 64 + fs * 48 + ks * 24 + 8 + (mat * 2 + ni) * 4

    def reads(stage):
        slot = stage % NS1
        grp = slot // 2
        ob = (slot % 2) * ST1
        vx = [14 + 4 * grp, 15 + 4 * grp]
        vw = [16 + 4 * grp, 17 + 4 * grp]
        fs = stage % 2
        for ks in range(2):
            for mi in range(2):
                bb = xf(fs, ks, mi)
                e(f"  ds_read_b128 v[{bb}:{bb+3}], v{vx[ks]} offset:{ob + mi*2048}")
            for mat in range(2):
                for ni in range(2):
                    bb = wf(fs, ks, mat, ni)
                    for hf in range(2):
                        off = ob + mat * 8192 + ks * 4096 + hf * 512
                        e(f"  ds_read_b64_tr_b16 v[{bb+2*hf}:{bb+2*hf+1}], v{vw[ni]} offset:{off}")

    for st in range(1, LI1):
        issue(st)
    nxt = LI1
    stamp()
    e(f"  s_waitcnt vmcnt({vm_wait_for(('st', 0))})")
    e("  s_barrier")
    reads(0)
    for s in range(NSTAGE1):
        fill = []
        if s + 1 < NSTAGE1:
            e(f"  s_waitcnt vmcnt({vm_wait_for(('st', s + 1))}) lgkmcnt(0)")
            e("  s_barrier")
            if s in (0, 1, 2, 4, 8, 12, 14):
                stamp()
            dg = []
            cnt = 0
            while nxt < NSTAGE1 and nxt <= s + LA1 and cnt < 2:
                dg += split_groups(capture(issue, nxt), "buffer_load")
                nxt += 1
                cnt += 1
            if PFD and s == PFD_STAGE:
                nt = " nt" if PFD_NT else ""
                dg.append([f"  buffer_load_dword v31, v29, s[24:27], 0 offen{nt}"])
                vm_issue("pf")
            rg = [[ln] for ln in capture(reads, s + 1)]
            fill = merge(rg, dg)
        else:
            e("  s_waitcnt lgkmcnt(0)")
        fs = s % 2
        mf = []
        for ks in range(2):
            for mat in range(2):
                for ni in range(2):
                    for mi in range(2):
                        w = wf(fs, ks, mat, ni)
                        x = xf(fs, ks, mi)
                        ac = acc(mat, mi, ni)
                        mf.append(f"  v_mfma_f32_16x16x32_bf16 {ac}, v[{w}:{w+3}], v[{x}:{x+3}], {ac}")
        interleave(mf, fill)
    stamp()
    e("  v_and_b32 v5, 15, v1")
    e("  s_lshl_b32 s47, s45, 5")
    e("  s_add_u32 s47, s47, s37")
    e("  v_add_u32 v5, s47, v5")
    e("  v_mul_lo_u32 v5, v5, s42")
    e("  v_lshrrev_b32 v6, 4, v1")
    e("  v_lshlrev_b32 v6, 3, v6")
    e("  s_lshl_b32 s47, s46, 6")
    e("  s_add_u32 s47, s47, s43")
    e("  v_add_u32 v6, s47, v6")
    e("  v_add_u32 v26, v5, v6")
    e("  v_add_u32 v27, 114688, v26")
    e("  s_mov_b32 s50, 0xbfb8aa3b")
    e("  s_mov_b32 s51, 0xffff0000")
    e("  s_nop 7")
    for mi in range(2):
        for ni in range(2):
            g = 32 + ((0 * 2 + mi) * 2 + ni) * 4
            u = 32 + ((1 * 2 + mi) * 2 + ni) * 4
            t = 64 + (mi * 2 + ni) * 24
            e(f"  v_cvt_pk_bf16_f32 v{t+12}, v{g}, v{g+1}")
            e(f"  v_cvt_pk_bf16_f32 v{t+13}, v{g+2}, v{g+3}")
            e(f"  v_cvt_pk_bf16_f32 v{t+14}, v{u}, v{u+1}")
            e(f"  v_cvt_pk_bf16_f32 v{t+15}, v{u+2}, v{u+3}")
            for p in range(2):
                e(f"  v_lshlrev_b32 v{t+2*p}, 16, v{t+12+p}")
                e(f"  v_and_b32 v{t+2*p+1}, s51, v{t+12+p}")
                e(f"  v_lshlrev_b32 v{t+4+2*p}, 16, v{t+14+p}")
                e(f"  v_and_b32 v{t+4+2*p+1}, s51, v{t+14+p}")
            for i in range(4):
                e(f"  v_mul_f32 v{t+8+i}, s50, v{t+i}")
            for i in range(4):
                e(f"  v_exp_f32 v{t+8+i}, v{t+8+i}")
            for i in range(4):
                e(f"  v_add_f32 v{t+8+i}, 1.0, v{t+8+i}")
            for i in range(4):
                e(f"  v_rcp_f32 v{t+8+i}, v{t+8+i}")
            for i in range(4):
                e(f"  v_mul_f32 v{t+8+i}, v{t+i}, v{t+8+i}")
            e(f"  v_cvt_pk_bf16_f32 v{t+12}, v{t+8}, v{t+9}")
            e(f"  v_cvt_pk_bf16_f32 v{t+13}, v{t+10}, v{t+11}")
            for p in range(2):
                e(f"  v_lshlrev_b32 v{t+8+2*p}, 16, v{t+12+p}")
                e(f"  v_and_b32 v{t+8+2*p+1}, s51, v{t+12+p}")
            for i in range(4):
                e(f"  v_mul_f32 v{t+8+i}, v{t+8+i}, v{t+4+i}")
            e(f"  v_cvt_pk_bf16_f32 v{t+16}, v{t+8}, v{t+9}")
            e(f"  v_cvt_pk_bf16_f32 v{t+17}, v{t+10}, v{t+11}")
            e(f"  buffer_store_dwordx2 v[{t+16}:{t+17}], v{26+mi}, s[16:19], 0 offen offset:{ni*32}")
    if STAMP:
        e("  s_waitcnt vmcnt(0)")
    stamp()
    stamp_out(WGSEL1)
    e("L_k1_end:")
    e("  s_endpgm")


NS2 = 5
ST2 = 8192
WREG2 = NS2 * ST2
LDS2 = 4 * WREG2
NSTAGE2 = 896 // 64


def k2():
    del VM[:]
    e(".globl ffn_down_kernel")
    e(".p2align 8")
    e(".type ffn_down_kernel,@function")
    e("ffn_down_kernel:")
    stamp()
    e("  s_cmp_ge_u32 s2, 256")
    e("  s_cbranch_scc1 L_k2_end")
    e("  s_load_dwordx4 s[24:27], s[0:1], 24")
    e("  s_load_dwordx2 s[28:29], s[0:1], 48")
    e("  s_and_b32 s32, s2, 7")
    e("  s_lshr_b32 s33, s2, 3")
    e("  s_lshr_b32 s34, s33, 2")
    e("  s_and_b32 s35, s33, 3")
    e("  s_lshl_b32 s36, s32, 2")
    e("  s_add_u32 s36, s36, s35")
    e("  s_lshl_b32 s37, s34, 5")
    e("  s_lshl_b32 s38, s36, 5")
    e("  v_and_b32 v1, 63, v0")
    e("  v_lshrrev_b32 v2, 6, v0")
    e("  v_lshrrev_b32 v3, 3, v1")
    e("  v_readfirstlane_b32 s39, v2")
    e("  v_and_b32 v4, 7, v1")
    e("  s_mul_i32 s40, s39, 896")
    e("  s_mul_i32 s52, s35, 15")
    e("  s_lshr_b32 s52, s52, 2")
    e("  s_lshl_b32 s53, s34, 1")
    e("  s_add_u32 s52, s52, s53")
    if not ROT:
        e("  s_mov_b32 s52, 0")
    e("  v_add_u32 v5, s37, v3")
    e("  s_movk_i32 s42, 7168")
    e("  v_mul_lo_u32 v5, v5, s42")
    e("  s_lshl_b32 s41, s40, 1")
    e("  v_add_u32 v5, s41, v5")
    e("  v_xor_b32 v6, v4, v3")
    e("  v_lshlrev_b32 v6, 4, v6")
    e("  v_add_u32 v10, v5, v6")
    e("  v_lshrrev_b32 v5, 2, v1")
    e("  v_add_u32 v5, s40, v5")
    e("  v_lshlrev_b32 v5, 11, v5")
    e("  s_lshl_b32 s43, s38, 1")
    e("  v_add_u32 v5, s43, v5")
    e("  v_and_b32 v6, 3, v1")
    e("  v_lshrrev_b32 v7, 5, v1")
    e("  v_lshlrev_b32 v7, 1, v7")
    e("  v_xor_b32 v6, v6, v7")
    e("  v_lshlrev_b32 v6, 4, v6")
    e("  v_add_u32 v11, v5, v6")
    e(f"  s_mul_i32 s44, s39, {WREG2}")
    e("  s_lshl_b32 s45, s33, 2")
    e("  s_add_u32 s45, s45, s39")
    e("  s_lshl_b32 s45, s45, 14")
    e("  v_lshlrev_b32 v5, 7, v1")
    e("  v_add_u32 v28, s45, v5")
    e("  v_add_u32 v29, 8192, v28")
    e("  s_waitcnt lgkmcnt(0)")
    srd(4, 28, H_BYTES)
    srd(8, 24, W_BYTES)

    def issue(stage):
        sb = (stage % NS2) * ST2
        e(f"  s_add_u32 s53, s52, {stage}")
        e("  s_cmp_ge_u32 s53, 28")
        e("  s_cselect_b32 s54, 28, 0")
        e("  s_sub_u32 s53, s53, s54")
        e("  s_cmp_ge_u32 s53, 14")
        e("  s_cselect_b32 s54, 14, 0")
        e("  s_sub_u32 s53, s53, s54")
        e("  s_lshl_b32 s54, s53, 7")
        e("  s_lshl_b32 s55, s53, 17")
        nt = " nt" if stage < NTS2 else ""
        for i in range(4):
            e(f"  s_add_u32 s48, s55, {16*i*2048}")
            e(f"  s_add_u32 m0, s44, {sb + 4096 + i*1024}")
            e("  s_nop 0")
            e(f"  buffer_load_dwordx4 v11, s[8:11], s48 offen{nt} lds")
            vm_issue(("st", stage))
        for i in range(4):
            e(f"  s_add_u32 s48, s54, {i*8*7168}")
            e(f"  s_add_u32 m0, s44, {sb + i*1024}")
            e("  s_nop 0")
            e("  buffer_load_dwordx4 v10, s[4:7], s48 offen lds")
            vm_issue(("st", stage))

    stamp()
    if PFH:
        e("  buffer_load_dword v30, v28, s[4:7], 0 offen")
        vm_issue("pf")
        e("  buffer_load_dword v31, v29, s[4:7], 0 offen")
        vm_issue("pf")
    issue(0)
    srd(16, 26, O_BYTES)
    e("  v_and_b32 v5, 15, v1")
    e("  v_lshlrev_b32 v5, 7, v5")
    e("  v_add_u32 v5, s44, v5")
    e("  v_lshrrev_b32 v6, 4, v1")
    e("  v_xor_b32 v7, v6, v4")
    e("  v_lshlrev_b32 v8, 4, v7")
    e("  v_add_u32 v14, v5, v8")
    e("  v_xor_b32 v7, 4, v7")
    e("  v_lshlrev_b32 v8, 4, v7")
    e("  v_add_u32 v15, v5, v8")
    e("  v_lshrrev_b32 v7, 2, v1")
    e("  v_and_b32 v7, 3, v7")
    e("  v_lshlrev_b32 v8, 3, v6")
    e("  v_add_u32 v8, v8, v7")
    e("  v_lshlrev_b32 v8, 6, v8")
    e("  v_and_b32 v9, 1, v1")
    e("  v_lshlrev_b32 v9, 3, v9")
    e("  v_add_u32 v8, v8, v9")
    e("  v_add_u32 v8, 4096, v8")
    e("  v_add_u32 v8, s44, v8")
    e("  v_and_b32 v9, 1, v6")
    e("  v_lshlrev_b32 v9, 1, v9")
    e("  v_lshrrev_b32 v5, 1, v1")
    e("  v_and_b32 v5, 1, v5")
    e("  v_xor_b32 v7, v5, v9")
    e("  v_lshlrev_b32 v7, 4, v7")
    e("  v_add_u32 v16, v8, v7")
    e("  v_add_u32 v5, 2, v5")
    e("  v_xor_b32 v7, v5, v9")
    e("  v_lshlrev_b32 v7, 4, v7")
    e("  v_add_u32 v17, v8, v7")
    for i in range(16):
        e(f"  v_mov_b32 v{32+i}, 0")

    def acc(mi, ni):
        return 32 + (mi * 2 + ni) * 4

    def xf(fs, ks, mi):
        return 64 + fs * 32 + ks * 16 + mi * 4

    def wf(fs, ks, ni):
        return 64 + fs * 32 + ks * 16 + 8 + ni * 4

    def reads(stage):
        sb = (stage % NS2) * ST2
        fs = stage % 2
        for ks in range(2):
            for mi in range(2):
                bb = xf(fs, ks, mi)
                e(f"  ds_read_b128 v[{bb}:{bb+3}], v{14+ks} offset:{sb + mi*2048}")
            for ni in range(2):
                bb = wf(fs, ks, ni)
                for hf in range(2):
                    e(f"  ds_read_b64_tr_b16 v[{bb+2*hf}:{bb+2*hf+1}], v{16+ni} offset:{sb + ks*2048 + hf*256}")

    for st in range(1, LI2):
        issue(st)
    nxt = LI2
    stamp()
    e(f"  s_waitcnt vmcnt({vm_wait_for(('st', 0))})")
    reads(0)
    for s in range(NSTAGE2):
        fill = []
        if s + 1 < NSTAGE2:
            e(f"  s_waitcnt vmcnt({vm_wait_for(('st', s + 1))}) lgkmcnt(0)")
            if s in (0, 1, 2, 4, 8, 12):
                stamp()
            dg = []
            cnt = 0
            while nxt < NSTAGE2 and nxt <= s + LA2 and cnt < 2:
                dg += split_groups(capture(issue, nxt), "buffer_load")
                nxt += 1
                cnt += 1
            rg = [[ln] for ln in capture(reads, s + 1)]
            fill = merge(rg, dg)
        else:
            e("  s_waitcnt lgkmcnt(0)")
        fs = s % 2
        mf = []
        for ks in range(2):
            for ni in range(2):
                for mi in range(2):
                    ac = acc(mi, ni)
                    w = wf(fs, ks, ni)
                    x = xf(fs, ks, mi)
                    mf.append(f"  v_mfma_f32_16x16x32_bf16 v[{ac}:{ac+3}], v[{w}:{w+3}], v[{x}:{x+3}], v[{ac}:{ac+3}]")
        interleave(mf, fill)
    stamp()
    e("  v_lshlrev_b32 v18, 4, v1")
    e("  v_add_u32 v19, s44, v18")
    e("  s_lshl_b32 s45, s39, 10")
    e("  v_add_u32 v20, s45, v18")
    e(f"  v_add_u32 v21, {2*WREG2}, v20")
    e("  s_lshr_b32 s45, s39, 1")
    e("  s_and_b32 s46, s39, 1")
    e("  s_lshl_b32 s45, s45, 4")
    e("  s_add_u32 s45, s45, s37")
    e("  v_and_b32 v5, 15, v1")
    e("  v_add_u32 v5, s45, v5")
    e("  v_lshlrev_b32 v5, 11, v5")
    e("  s_lshl_b32 s46, s46, 5")
    e("  s_add_u32 s46, s46, s43")
    e("  v_lshrrev_b32 v6, 4, v1")
    e("  v_lshlrev_b32 v6, 3, v6")
    e("  v_add_u32 v6, s46, v6")
    e("  v_add_u32 v5, v5, v6")
    e("  s_nop 7")
    for t in range(4):
        a = 32 + t * 4
        e(f"  ds_write_b128 v19, v[{a}:{a+3}] offset:{t*1024}")
    e("  s_waitcnt lgkmcnt(0)")
    e("  s_barrier")
    for r in range(2):
        e(f"  ds_read_b128 v[{64+4*r}:{67+4*r}], v20 offset:{r*WREG2}")
    for r in range(2):
        e(f"  ds_read_b128 v[{72+4*r}:{75+4*r}], v21 offset:{r*WREG2}")
    e("  s_waitcnt lgkmcnt(0)")
    for i in range(4):
        e(f"  v_add_f32 v{64+i}, v{64+i}, v{68+i}")
        e(f"  v_add_f32 v{72+i}, v{72+i}, v{76+i}")
    for i in range(4):
        e(f"  v_add_f32 v{64+i}, v{64+i}, v{72+i}")
    e("  v_cvt_pk_bf16_f32 v80, v64, v65")
    e("  v_cvt_pk_bf16_f32 v81, v66, v67")
    e("  buffer_store_dwordx2 v[80:81], v5, s[16:19], 0 offen")
    if STAMP:
        e("  s_waitcnt vmcnt(0)")
    stamp()
    stamp_out(WGSEL2)
    e("L_k2_end:")
    e("  s_endpgm")


def kd(name, nv, ns):
    acc_off = ((nv + 3) // 4) * 4
    e(f".amdhsa_kernel {name}")
    e(f"  .amdhsa_next_free_vgpr {nv}")
    e(f"  .amdhsa_next_free_sgpr {ns}")
    e(f"  .amdhsa_accum_offset {acc_off}")
    e("  .amdhsa_group_segment_fixed_size 0")
    e("  .amdhsa_kernarg_size 56")
    e("  .amdhsa_user_sgpr_count 2")
    e("  .amdhsa_user_sgpr_kernarg_segment_ptr 1")
    e("  .amdhsa_system_sgpr_workgroup_id_x 1")
    e(".end_amdhsa_kernel")


L.append(HEADER % (LDS1, LDS2))
k1()
k2()
e('.section .rodata,"a"')
e(".p2align 6")
kd("ffn_up_kernel", 248 if STAMP else 160, 102 if STAMP else 64)
e(".p2align 6")
kd("ffn_down_kernel", 248 if STAMP else 128, 102 if STAMP else 64)
open(OUT, "w").write("\n".join(L) + "\n")
print("wrote", OUT, len(L), "lines")
```

```python
import sys, os

OUT = sys.argv[1] if len(sys.argv) > 1 else "standalone__swiglu_ffn__sampling.s"


def env(name, dflt):
    return int(os.environ.get(name, str(dflt)))


STAMP = env("STAMP", 0)
WGSEL1 = env("WGSEL1", 0)
WGSEL2 = env("WGSEL2", 1)
ROT = env("ROT", 1)
LA1 = env("LA1", 5)
LA2 = env("LA2", 5)
LI1 = env("LI1", 3)
LI2 = env("LI2", 3)
NTS1 = env("NTS1", 4)
NTS2 = env("NTS2", 0)
PFX = env("PFX", 1)
PFD = env("PFD", 1)
PFD_STAGE = env("PFD_STAGE", 5)
PFD_NT = env("PFD_NT", 1)
PFH = env("PFH", 0)

M, D, F = 256, 1024, 3584
X_BYTES = M * D * 2
W_BYTES = D * F * 2
H_BYTES = M * F * 2
O_BYTES = M * D * 2

L = []
NST = [0]
VM = []


def e(s=""):
    L.append(s)


def vm_issue(tag):
    VM.append(tag)


def vm_wait_for(tag):
    last = max(i for i, t in enumerate(VM) if t == tag)
    n = len(VM) - 1 - last
    assert n <= 63
    return n


def stamp():
    if STAMP:
        i = NST[0]
        NST[0] += 1
        e(f"  s_memtime s[{64+2*i}:{65+2*i}]")
        if i == 0:
            e("  s_memrealtime s[96:97]")


def stamp_out(wgsel):
    if not STAMP:
        return
    n = NST[0]
    NST[0] = 0
    e("  s_memrealtime s[98:99]")
    e("  s_waitcnt lgkmcnt(0) vmcnt(0)")
    e(f"  s_cmp_lg_u32 s2, {wgsel}")
    e(f"  s_cbranch_scc1 L_nostamp_{wgsel}")
    e("  s_cmp_lg_u32 s39, 0")
    e(f"  s_cbranch_scc1 L_nostamp_{wgsel}")
    if STAMP == 2 and wgsel == WGSEL1:
        e("  s_load_dwordx2 s[56:57], s[0:1], 48")
        e("  s_waitcnt lgkmcnt(0)")
        e("  s_mov_b32 s58, 0x10000000")
        e("  v_mov_b32 v240, 0x8000000")
    else:
        e("  s_load_dwordx2 s[56:57], s[0:1], 40")
        e("  s_waitcnt lgkmcnt(0)")
        e("  s_mov_b32 s58, 256")
        e("  v_mov_b32 v240, 0")
    e("  s_mov_b32 s59, 0x00020000")
    e("  s_and_b32 s57, s57, 0xffff")
    if STAMP == 2 and wgsel == WGSEL2:
        e("  s_load_dwordx2 s[60:61], s[0:1], 48")
        e("  s_waitcnt lgkmcnt(0)")
        e("  s_mov_b32 s62, 0x10000000")
        e("  s_mov_b32 s63, 0x00020000")
        e("  s_and_b32 s61, s61, 0xffff")
        e("  v_lshlrev_b32 v242, 2, v1")
        e("  v_add_u32 v243, 0x8000000, v242")
        e("  buffer_load_dword v244, v243, s[60:63], 0 offen sc0 sc1")
        e("  s_waitcnt vmcnt(0)")
        e("  v_cmp_gt_u32 vcc, 16, v1")
        e("  s_and_saveexec_b64 s[60:61], vcc")
        e("  buffer_store_dword v244, v242, s[56:59], 0 offen")
        e("  s_mov_b64 exec, s[60:61]")
        e(f"  s_branch L_nostamp_{wgsel}")
    for i in range(1, n):
        e(f"  s_sub_u32 s62, s{64+2*i}, s64")
        e("  v_mov_b32 v241, s62")
        e(f"  buffer_store_dword v241, v240, s[56:59], 0 offen offset:{4*(i-1)}")
    e("  s_sub_u32 s62, s98, s96")
    e("  v_mov_b32 v241, s62")
    e("  buffer_store_dword v241, v240, s[56:59], 0 offen offset:60")
    e(f"L_nostamp_{wgsel}:")


def capture(fn, *args):
    save = len(L)
    fn(*args)
    lines = L[save:]
    del L[save:]
    return lines


def split_groups(lines, key):
    groups, cur = [], []
    for ln in lines:
        cur.append(ln)
        if key in ln:
            groups.append(cur)
            cur = []
    if cur:
        groups.append(cur)
    return groups


def interleave(mfmas, fillers):
    n = len(mfmas)
    nf = len(fillers)
    fi = 0
    for i, m in enumerate(mfmas):
        e(m)
        want = ((i + 1) * nf + n - 1) // n
        while fi < want and fi < nf:
            for ln in fillers[fi]:
                e(ln)
            fi += 1
    while fi < nf:
        for ln in fillers[fi]:
            e(ln)
        fi += 1


def merge(a, b):
    out = []
    ia = ib = 0
    na, nb = len(a), len(b)
    while ia < na or ib < nb:
        if ib >= nb or (ia < na and ia * nb <= ib * na):
            out.append(a[ia]); ia += 1
        else:
            out.append(b[ib]); ib += 1
    return out


def srd(dst, base, nbytes):
    e(f"  s_mov_b32 s{dst}, s{base}")
    e(f"  s_and_b32 s{dst+1}, s{base+1}, 0xffff")
    e(f"  s_mov_b32 s{dst+2}, {nbytes}")
    e(f"  s_mov_b32 s{dst+3}, 0x00020000")


HEADER = """; Kernarg layout for this problem (56 bytes, ptrs only, base s[0:1]):
; @launch kernel=ffn_up_kernel grid=(224,1,1) block=(256,1,1) lds=%d
; @launch kernel=ffn_down_kernel grid=(256,1,1) block=(256,1,1) lds=%d
.amdgcn_target "amdgcn-amd-amdhsa--gfx950"
.text
"""

NS1 = 6
ST1 = 24576
LDS1 = NS1 * ST1
NSTAGE1 = D // 64


def k1():
    del VM[:]
    e(".globl ffn_up_kernel")
    e(".p2align 8")
    e(".type ffn_up_kernel,@function")
    e("ffn_up_kernel:")
    stamp()
    e("  s_cmp_ge_u32 s2, 224")
    e("  s_cbranch_scc1 L_k1_end")
    e("  s_load_dwordx4 s[24:27], s[0:1], 0")
    e("  s_load_dwordx4 s[28:31], s[0:1], 16")
    e("  s_load_dwordx2 s[22:23], s[0:1], 48")
    e("  s_and_b32 s32, s2, 7")
    e("  s_lshr_b32 s33, s2, 3")
    e("  s_and_b32 s34, s33, 3")
    e("  s_lshr_b32 s35, s2, 5")
    e("  s_lshl_b32 s36, s35, 3")
    e("  s_add_u32 s36, s36, s32")
    e("  s_lshl_b32 s52, s34, 2")
    if not ROT:
        e("  s_mov_b32 s52, 0")
    e("  s_lshl_b32 s37, s34, 6")
    e("  s_lshl_b32 s38, s36, 6")
    e("  v_and_b32 v1, 63, v0")
    e("  v_lshrrev_b32 v2, 6, v0")
    e("  v_lshrrev_b32 v3, 3, v1")
    e("  v_readfirstlane_b32 s39, v2")
    e("  v_and_b32 v4, 7, v1")
    e("  s_lshl_b32 s40, s39, 4")
    e("  s_add_u32 s41, s40, s37")
    e("  v_add_u32 v5, s41, v3")
    e("  v_lshlrev_b32 v5, 11, v5")
    e("  v_xor_b32 v6, v4, v3")
    e("  v_lshlrev_b32 v6, 4, v6")
    e("  v_add_u32 v10, v5, v6")
    e("  v_add_u32 v11, 16384, v10")
    e("  v_add_u32 v5, s40, v3")
    e("  s_movk_i32 s42, 7168")
    e("  v_mul_lo_u32 v5, v5, s42")
    e("  s_lshl_b32 s43, s38, 1")
    e("  v_add_u32 v5, s43, v5")
    e("  v_and_b32 v6, 3, v3")
    e("  v_xor_b32 v7, v4, v6")
    e("  v_lshlrev_b32 v7, 4, v7")
    e("  v_add_u32 v12, v5, v7")
    e("  v_xor_b32 v7, 4, v6")
    e("  v_xor_b32 v7, v4, v7")
    e("  v_lshlrev_b32 v7, 4, v7")
    e("  v_add_u32 v13, v5, v7")
    e("  v_add_u32 v13, 57344, v13")
    e("  s_lshl_b32 s44, s39, 11")
    e("  s_lshl_b32 s45, s33, 2")
    e("  s_add_u32 s45, s45, s39")
    e("  s_lshl_b32 s46, s45, 13")
    e("  v_lshlrev_b32 v5, 7, v1")
    e("  v_add_u32 v28, s46, v5")
    e("  s_lshl_b32 s46, s45, 5")
    e("  v_lshrrev_b32 v5, 1, v1")
    e("  v_add_u32 v5, s46, v5")
    e("  v_lshlrev_b32 v5, 11, v5")
    e("  v_and_b32 v6, 1, v1")
    e("  v_lshlrev_b32 v6, 7, v6")
    e("  v_add_u32 v5, v5, v6")
    e("  s_lshl_b32 s46, s32, 8")
    e("  v_add_u32 v29, s46, v5")
    e("  s_waitcnt lgkmcnt(0)")
    srd(4, 24, X_BYTES)
    srd(8, 26, W_BYTES)
    srd(12, 28, W_BYTES)

    def issue(stage):
        slot = stage % NS1
        sb = slot * ST1
        e(f"  s_add_u32 s53, s52, {stage}")
        e("  s_and_b32 s53, s53, 15")
        e("  s_lshl_b32 s48, s53, 7")
        e(f"  s_mul_i32 s49, s53, {64*7168}")
        nt = " nt" if stage < NTS1 else ""
        for mat in range(2):
            for j in range(2):
                e(f"  s_add_u32 m0, s44, {sb + 8192 + mat*8192 + j*1024}")
                e("  s_nop 0")
                e(f"  buffer_load_dwordx4 v{12+j}, s[{8+4*mat}:{11+4*mat}], s49 offen{nt} lds")
                vm_issue(("st", stage))
        for j in range(2):
            e(f"  s_add_u32 m0, s44, {sb + j*1024}")
            e("  s_nop 0")
            e(f"  buffer_load_dwordx4 v{10+j}, s[4:7], s48 offen lds")
            vm_issue(("st", stage))

    stamp()
    if PFX:
        e("  buffer_load_dword v30, v28, s[4:7], 0 offen")
        vm_issue("pf")
    issue(0)
    srd(16, 22, H_BYTES)
    srd(24, 30, W_BYTES)
    e("  s_lshr_b32 s45, s39, 1")
    e("  s_and_b32 s46, s39, 1")
    e("  v_and_b32 v5, 15, v1")
    e("  s_lshl_b32 s47, s45, 5")
    e("  v_add_u32 v5, s47, v5")
    e("  v_lshlrev_b32 v5, 7, v5")
    e("  v_lshrrev_b32 v6, 4, v1")
    e("  v_xor_b32 v7, v6, v4")
    e("  v_lshlrev_b32 v8, 4, v7")
    e("  v_add_u32 v14, v5, v8")
    e("  v_xor_b32 v7, 4, v7")
    e("  v_lshlrev_b32 v8, 4, v7")
    e("  v_add_u32 v15, v5, v8")
    e("  v_lshrrev_b32 v7, 2, v1")
    e("  v_and_b32 v7, 3, v7")
    e("  v_lshlrev_b32 v8, 3, v6")
    e("  v_add_u32 v8, v8, v7")
    e("  v_lshlrev_b32 v8, 7, v8")
    e("  v_and_b32 v9, 1, v1")
    e("  v_lshlrev_b32 v9, 3, v9")
    e("  v_add_u32 v8, v8, v9")
    e("  v_add_u32 v8, 8192, v8")
    e("  v_and_b32 v9, 1, v6")
    e("  v_lshlrev_b32 v9, 2, v9")
    e("  v_or_b32 v9, v9, v7")
    e("  v_lshrrev_b32 v5, 1, v1")
    e("  v_and_b32 v5, 1, v5")
    e("  s_lshl_b32 s47, s46, 2")
    e("  v_add_u32 v5, s47, v5")
    e("  v_xor_b32 v7, v5, v9")
    e("  v_lshlrev_b32 v7, 4, v7")
    e("  v_add_u32 v16, v8, v7")
    e("  v_add_u32 v5, 2, v5")
    e("  v_xor_b32 v7, v5, v9")
    e("  v_lshlrev_b32 v7, 4, v7")
    e("  v_add_u32 v17, v8, v7")
    for i in range(4):
        e(f"  v_add_u32 v{18+i}, 49152, v{14+i}")
        e(f"  v_add_u32 v{22+i}, 98304, v{14+i}")
    for i in range(32):
        e(f"  v_mov_b32 v{32+i}, 0")

    def acc(mat, mi, ni):
        b = 32 + ((mat * 2 + mi) * 2 + ni) * 4
        return f"v[{b}:{b+3}]"

    def xf(fs, ks, mi):
        return 64 + fs * 48 + ks * 24 + mi * 4

    def wf(fs, ks, mat, ni):
        return 64 + fs * 48 + ks * 24 + 8 + (mat * 2 + ni) * 4

    def reads(stage):
        slot = stage % NS1
        grp = slot // 2
        ob = (slot % 2) * ST1
        vx = [14 + 4 * grp, 15 + 4 * grp]
        vw = [16 + 4 * grp, 17 + 4 * grp]
        fs = stage % 2
        for ks in range(2):
            for mi in range(2):
                bb = xf(fs, ks, mi)
                e(f"  ds_read_b128 v[{bb}:{bb+3}], v{vx[ks]} offset:{ob + mi*2048}")
            for mat in range(2):
                for ni in range(2):
                    bb = wf(fs, ks, mat, ni)
                    for hf in range(2):
                        off = ob + mat * 8192 + ks * 4096 + hf * 512
                        e(f"  ds_read_b64_tr_b16 v[{bb+2*hf}:{bb+2*hf+1}], v{vw[ni]} offset:{off}")

    for st in range(1, LI1):
        issue(st)
    nxt = LI1
    stamp()
    e(f"  s_waitcnt vmcnt({vm_wait_for(('st', 0))})")
    e("  s_barrier")
    reads(0)
    for s in range(NSTAGE1):
        fill = []
        if s + 1 < NSTAGE1:
            e(f"  s_waitcnt vmcnt({vm_wait_for(('st', s + 1))}) lgkmcnt(0)")
            e("  s_barrier")
            if s in (0, 1, 2, 4, 8, 12, 14):
                stamp()
            dg = []
            cnt = 0
            while nxt < NSTAGE1 and nxt <= s + LA1 and cnt < 2:
                dg += split_groups(capture(issue, nxt), "buffer_load")
                nxt += 1
                cnt += 1
            if PFD and s == PFD_STAGE:
                nt = " nt" if PFD_NT else ""
                dg.append([f"  buffer_load_dword v31, v29, s[24:27], 0 offen{nt}"])
                vm_issue("pf")
            rg = [[ln] for ln in capture(reads, s + 1)]
            fill = merge(rg, dg)
        else:
            e("  s_waitcnt lgkmcnt(0)")
        fs = s % 2
        mf = []
        for ks in range(2):
            for mat in range(2):
                for ni in range(2):
                    for mi in range(2):
                        w = wf(fs, ks, mat, ni)
                        x = xf(fs, ks, mi)
                        ac = acc(mat, mi, ni)
                        mf.append(f"  v_mfma_f32_16x16x32_bf16 {ac}, v[{w}:{w+3}], v[{x}:{x+3}], {ac}")
        interleave(mf, fill)
    stamp()
    e("  v_and_b32 v5, 15, v1")
    e("  s_lshl_b32 s47, s45, 5")
    e("  s_add_u32 s47, s47, s37")
    e("  v_add_u32 v5, s47, v5")
    e("  v_mul_lo_u32 v5, v5, s42")
    e("  v_lshrrev_b32 v6, 4, v1")
    e("  v_lshlrev_b32 v6, 3, v6")
    e("  s_lshl_b32 s47, s46, 6")
    e("  s_add_u32 s47, s47, s43")
    e("  v_add_u32 v6, s47, v6")
    e("  v_add_u32 v26, v5, v6")
    e("  v_add_u32 v27, 114688, v26")
    e("  s_mov_b32 s50, 0xbfb8aa3b")
    e("  s_mov_b32 s51, 0xffff0000")
    e("  s_nop 7")
    for mi in range(2):
        for ni in range(2):
            g = 32 + ((0 * 2 + mi) * 2 + ni) * 4
            u = 32 + ((1 * 2 + mi) * 2 + ni) * 4
            t = 64 + (mi * 2 + ni) * 24
            e(f"  v_cvt_pk_bf16_f32 v{t+12}, v{g}, v{g+1}")
            e(f"  v_cvt_pk_bf16_f32 v{t+13}, v{g+2}, v{g+3}")
            e(f"  v_cvt_pk_bf16_f32 v{t+14}, v{u}, v{u+1}")
            e(f"  v_cvt_pk_bf16_f32 v{t+15}, v{u+2}, v{u+3}")
            for p in range(2):
                e(f"  v_lshlrev_b32 v{t+2*p}, 16, v{t+12+p}")
                e(f"  v_and_b32 v{t+2*p+1}, s51, v{t+12+p}")
                e(f"  v_lshlrev_b32 v{t+4+2*p}, 16, v{t+14+p}")
                e(f"  v_and_b32 v{t+4+2*p+1}, s51, v{t+14+p}")
            for i in range(4):
                e(f"  v_mul_f32 v{t+8+i}, s50, v{t+i}")
            for i in range(4):
                e(f"  v_exp_f32 v{t+8+i}, v{t+8+i}")
            for i in range(4):
                e(f"  v_add_f32 v{t+8+i}, 1.0, v{t+8+i}")
            for i in range(4):
                e(f"  v_rcp_f32 v{t+8+i}, v{t+8+i}")
            for i in range(4):
                e(f"  v_mul_f32 v{t+8+i}, v{t+i}, v{t+8+i}")
            e(f"  v_cvt_pk_bf16_f32 v{t+12}, v{t+8}, v{t+9}")
            e(f"  v_cvt_pk_bf16_f32 v{t+13}, v{t+10}, v{t+11}")
            for p in range(2):
                e(f"  v_lshlrev_b32 v{t+8+2*p}, 16, v{t+12+p}")
                e(f"  v_and_b32 v{t+8+2*p+1}, s51, v{t+12+p}")
            for i in range(4):
                e(f"  v_mul_f32 v{t+8+i}, v{t+8+i}, v{t+4+i}")
            e(f"  v_cvt_pk_bf16_f32 v{t+16}, v{t+8}, v{t+9}")
            e(f"  v_cvt_pk_bf16_f32 v{t+17}, v{t+10}, v{t+11}")
            e(f"  buffer_store_dwordx2 v[{t+16}:{t+17}], v{26+mi}, s[16:19], 0 offen offset:{ni*32}")
    if STAMP:
        e("  s_waitcnt vmcnt(0)")
    stamp()
    stamp_out(WGSEL1)
    e("L_k1_end:")
    e("  s_endpgm")


NS2 = 5
ST2 = 8192
WREG2 = NS2 * ST2
LDS2 = 4 * WREG2
NSTAGE2 = 896 // 64


def k2():
    del VM[:]
    e(".globl ffn_down_kernel")
    e(".p2align 8")
    e(".type ffn_down_kernel,@function")
    e("ffn_down_kernel:")
    stamp()
    e("  s_cmp_ge_u32 s2, 256")
    e("  s_cbranch_scc1 L_k2_end")
    e("  s_load_dwordx4 s[24:27], s[0:1], 24")
    e("  s_load_dwordx2 s[28:29], s[0:1], 48")
    e("  s_and_b32 s32, s2, 7")
    e("  s_lshr_b32 s33, s2, 3")
    e("  s_lshr_b32 s34, s33, 2")
    e("  s_and_b32 s35, s33, 3")
    e("  s_lshl_b32 s36, s32, 2")
    e("  s_add_u32 s36, s36, s35")
    e("  s_lshl_b32 s37, s34, 5")
    e("  s_lshl_b32 s38, s36, 5")
    e("  v_and_b32 v1, 63, v0")
    e("  v_lshrrev_b32 v2, 6, v0")
    e("  v_lshrrev_b32 v3, 3, v1")
    e("  v_readfirstlane_b32 s39, v2")
    e("  v_and_b32 v4, 7, v1")
    e("  s_mul_i32 s40, s39, 896")
    e("  s_mul_i32 s52, s35, 15")
    e("  s_lshr_b32 s52, s52, 2")
    e("  s_lshl_b32 s53, s34, 1")
    e("  s_add_u32 s52, s52, s53")
    if not ROT:
        e("  s_mov_b32 s52, 0")
    e("  v_add_u32 v5, s37, v3")
    e("  s_movk_i32 s42, 7168")
    e("  v_mul_lo_u32 v5, v5, s42")
    e("  s_lshl_b32 s41, s40, 1")
    e("  v_add_u32 v5, s41, v5")
    e("  v_xor_b32 v6, v4, v3")
    e("  v_lshlrev_b32 v6, 4, v6")
    e("  v_add_u32 v10, v5, v6")
    e("  v_lshrrev_b32 v5, 2, v1")
    e("  v_add_u32 v5, s40, v5")
    e("  v_lshlrev_b32 v5, 11, v5")
    e("  s_lshl_b32 s43, s38, 1")
    e("  v_add_u32 v5, s43, v5")
    e("  v_and_b32 v6, 3, v1")
    e("  v_lshrrev_b32 v7, 5, v1")
    e("  v_lshlrev_b32 v7, 1, v7")
    e("  v_xor_b32 v6, v6, v7")
    e("  v_lshlrev_b32 v6, 4, v6")
    e("  v_add_u32 v11, v5, v6")
    e(f"  s_mul_i32 s44, s39, {WREG2}")
    e("  s_lshl_b32 s45, s33, 2")
    e("  s_add_u32 s45, s45, s39")
    e("  s_lshl_b32 s45, s45, 14")
    e("  v_lshlrev_b32 v5, 7, v1")
    e("  v_add_u32 v28, s45, v5")
    e("  v_add_u32 v29, 8192, v28")
    e("  s_waitcnt lgkmcnt(0)")
    srd(4, 28, H_BYTES)
    srd(8, 24, W_BYTES)

    def issue(stage):
        sb = (stage % NS2) * ST2
        e(f"  s_add_u32 s53, s52, {stage}")
        e("  s_cmp_ge_u32 s53, 28")
        e("  s_cselect_b32 s54, 28, 0")
        e("  s_sub_u32 s53, s53, s54")
        e("  s_cmp_ge_u32 s53, 14")
        e("  s_cselect_b32 s54, 14, 0")
        e("  s_sub_u32 s53, s53, s54")
        e("  s_lshl_b32 s54, s53, 7")
        e("  s_lshl_b32 s55, s53, 17")
        nt = " nt" if stage < NTS2 else ""
        for i in range(4):
            e(f"  s_add_u32 s48, s55, {16*i*2048}")
            e(f"  s_add_u32 m0, s44, {sb + 4096 + i*1024}")
            e("  s_nop 0")
            e(f"  buffer_load_dwordx4 v11, s[8:11], s48 offen{nt} lds")
            vm_issue(("st", stage))
        for i in range(4):
            e(f"  s_add_u32 s48, s54, {i*8*7168}")
            e(f"  s_add_u32 m0, s44, {sb + i*1024}")
            e("  s_nop 0")
            e("  buffer_load_dwordx4 v10, s[4:7], s48 offen lds")
            vm_issue(("st", stage))

    stamp()
    if PFH:
        e("  buffer_load_dword v30, v28, s[4:7], 0 offen")
        vm_issue("pf")
        e("  buffer_load_dword v31, v29, s[4:7], 0 offen")
        vm_issue("pf")
    issue(0)
    srd(16, 26, O_BYTES)
    e("  v_and_b32 v5, 15, v1")
    e("  v_lshlrev_b32 v5, 7, v5")
    e("  v_add_u32 v5, s44, v5")
    e("  v_lshrrev_b32 v6, 4, v1")
    e("  v_xor_b32 v7, v6, v4")
    e("  v_lshlrev_b32 v8, 4, v7")
    e("  v_add_u32 v14, v5, v8")
    e("  v_xor_b32 v7, 4, v7")
    e("  v_lshlrev_b32 v8, 4, v7")
    e("  v_add_u32 v15, v5, v8")
    e("  v_lshrrev_b32 v7, 2, v1")
    e("  v_and_b32 v7, 3, v7")
    e("  v_lshlrev_b32 v8, 3, v6")
    e("  v_add_u32 v8, v8, v7")
    e("  v_lshlrev_b32 v8, 6, v8")
    e("  v_and_b32 v9, 1, v1")
    e("  v_lshlrev_b32 v9, 3, v9")
    e("  v_add_u32 v8, v8, v9")
    e("  v_add_u32 v8, 4096, v8")
    e("  v_add_u32 v8, s44, v8")
    e("  v_and_b32 v9, 1, v6")
    e("  v_lshlrev_b32 v9, 1, v9")
    e("  v_lshrrev_b32 v5, 1, v1")
    e("  v_and_b32 v5, 1, v5")
    e("  v_xor_b32 v7, v5, v9")
    e("  v_lshlrev_b32 v7, 4, v7")
    e("  v_add_u32 v16, v8, v7")
    e("  v_add_u32 v5, 2, v5")
    e("  v_xor_b32 v7, v5, v9")
    e("  v_lshlrev_b32 v7, 4, v7")
    e("  v_add_u32 v17, v8, v7")
    for i in range(16):
        e(f"  v_mov_b32 v{32+i}, 0")

    def acc(mi, ni):
        return 32 + (mi * 2 + ni) * 4

    def xf(fs, ks, mi):
        return 64 + fs * 32 + ks * 16 + mi * 4

    def wf(fs, ks, ni):
        return 64 + fs * 32 + ks * 16 + 8 + ni * 4

    def reads(stage):
        sb = (stage % NS2) * ST2
        fs = stage % 2
        for ks in range(2):
            for mi in range(2):
                bb = xf(fs, ks, mi)
                e(f"  ds_read_b128 v[{bb}:{bb+3}], v{14+ks} offset:{sb + mi*2048}")
            for ni in range(2):
                bb = wf(fs, ks, ni)
                for hf in range(2):
                    e(f"  ds_read_b64_tr_b16 v[{bb+2*hf}:{bb+2*hf+1}], v{16+ni} offset:{sb + ks*2048 + hf*256}")

    for st in range(1, LI2):
        issue(st)
    nxt = LI2
    stamp()
    e(f"  s_waitcnt vmcnt({vm_wait_for(('st', 0))})")
    reads(0)
    for s in range(NSTAGE2):
        fill = []
        if s + 1 < NSTAGE2:
            e(f"  s_waitcnt vmcnt({vm_wait_for(('st', s + 1))}) lgkmcnt(0)")
            if s in (0, 1, 2, 4, 8, 12):
                stamp()
            dg = []
            cnt = 0
            while nxt < NSTAGE2 and nxt <= s + LA2 and cnt < 2:
                dg += split_groups(capture(issue, nxt), "buffer_load")
                nxt += 1
                cnt += 1
            rg = [[ln] for ln in capture(reads, s + 1)]
            fill = merge(rg, dg)
        else:
            e("  s_waitcnt lgkmcnt(0)")
        fs = s % 2
        mf = []
        for ks in range(2):
            for ni in range(2):
                for mi in range(2):
                    ac = acc(mi, ni)
                    w = wf(fs, ks, ni)
                    x = xf(fs, ks, mi)
                    mf.append(f"  v_mfma_f32_16x16x32_bf16 v[{ac}:{ac+3}], v[{w}:{w+3}], v[{x}:{x+3}], v[{ac}:{ac+3}]")
        interleave(mf, fill)
    stamp()
    e("  v_lshlrev_b32 v18, 4, v1")
    e("  v_add_u32 v19, s44, v18")
    e("  s_lshl_b32 s45, s39, 10")
    e("  v_add_u32 v20, s45, v18")
    e(f"  v_add_u32 v21, {2*WREG2}, v20")
    e("  s_lshr_b32 s45, s39, 1")
    e("  s_and_b32 s46, s39, 1")
    e("  s_lshl_b32 s45, s45, 4")
    e("  s_add_u32 s45, s45, s37")
    e("  v_and_b32 v5, 15, v1")
    e("  v_add_u32 v5, s45, v5")
    e("  v_lshlrev_b32 v5, 11, v5")
    e("  s_lshl_b32 s46, s46, 5")
    e("  s_add_u32 s46, s46, s43")
    e("  v_lshrrev_b32 v6, 4, v1")
    e("  v_lshlrev_b32 v6, 3, v6")
    e("  v_add_u32 v6, s46, v6")
    e("  v_add_u32 v5, v5, v6")
    e("  s_nop 7")
    for t in range(4):
        a = 32 + t * 4
        e(f"  ds_write_b128 v19, v[{a}:{a+3}] offset:{t*1024}")
    e("  s_waitcnt lgkmcnt(0)")
    e("  s_barrier")
    for r in range(2):
        e(f"  ds_read_b128 v[{64+4*r}:{67+4*r}], v20 offset:{r*WREG2}")
    for r in range(2):
        e(f"  ds_read_b128 v[{72+4*r}:{75+4*r}], v21 offset:{r*WREG2}")
    e("  s_waitcnt lgkmcnt(0)")
    for i in range(4):
        e(f"  v_add_f32 v{64+i}, v{64+i}, v{68+i}")
        e(f"  v_add_f32 v{72+i}, v{72+i}, v{76+i}")
    for i in range(4):
        e(f"  v_add_f32 v{64+i}, v{64+i}, v{72+i}")
    e("  v_cvt_pk_bf16_f32 v80, v64, v65")
    e("  v_cvt_pk_bf16_f32 v81, v66, v67")
    e("  buffer_store_dwordx2 v[80:81], v5, s[16:19], 0 offen")
    if STAMP:
        e("  s_waitcnt vmcnt(0)")
    stamp()
    stamp_out(WGSEL2)
    e("L_k2_end:")
    e("  s_endpgm")


def kd(name, nv, ns):
    acc_off = ((nv + 3) // 4) * 4
    e(f".amdhsa_kernel {name}")
    e(f"  .amdhsa_next_free_vgpr {nv}")
    e(f"  .amdhsa_next_free_sgpr {ns}")
    e(f"  .amdhsa_accum_offset {acc_off}")
    e("  .amdhsa_group_segment_fixed_size 0")
    e("  .amdhsa_kernarg_size 56")
    e("  .amdhsa_user_sgpr_count 2")
    e("  .amdhsa_user_sgpr_kernarg_segment_ptr 1")
    e("  .amdhsa_system_sgpr_workgroup_id_x 1")
    e(".end_amdhsa_kernel")


L.append(HEADER % (LDS1, LDS2))
k1()
k2()
e('.section .rodata,"a"')
e(".p2align 6")
kd("ffn_up_kernel", 248 if STAMP else 160, 102 if STAMP else 64)
e(".p2align 6")
kd("ffn_down_kernel", 248 if STAMP else 128, 102 if STAMP else 64)
open(OUT, "w").write("\n".join(L) + "\n")
print("wrote", OUT, len(L), "lines")
```

```python
import sys, os

OUT = sys.argv[1] if len(sys.argv) > 1 else "standalone__swiglu_ffn__sampling.s"


def env(name, dflt):
    return int(os.environ.get(name, str(dflt)))


STAMP = env("STAMP", 0)
WGSEL1 = env("WGSEL1", 0)
WGSEL2 = env("WGSEL2", 1)
ROT = env("ROT", 1)
LA1 = env("LA1", 5)
LA2 = env("LA2", 4)
LI1 = env("LI1", 3)
LI2 = env("LI2", 3)
NTS1 = env("NTS1", 0)
NTS2 = env("NTS2", 0)
PFX = env("PFX", 1)
PFD = env("PFD", 0)
PFD_STAGE = env("PFD_STAGE", 5)
PFD_NT = env("PFD_NT", 1)
PFH = env("PFH", 0)
MAP1 = env("MAP1", 0)
ROTM1 = env("ROTM1", 4)
ROTM2 = env("ROTM2", 1)

M, D, F = 256, 1024, 3584
X_BYTES = M * D * 2
W_BYTES = D * F * 2
H_BYTES = M * F * 2
O_BYTES = M * D * 2

L = []
NST = [0]
VM = []


def e(s=""):
    L.append(s)


def vm_issue(tag):
    VM.append(tag)


def vm_wait_for(tag):
    last = max(i for i, t in enumerate(VM) if t == tag)
    n = len(VM) - 1 - last
    assert n <= 63
    return n


def stamp():
    if STAMP:
        i = NST[0]
        NST[0] += 1
        e(f"  s_memtime s[{64+2*i}:{65+2*i}]")
        if i == 0:
            e("  s_memrealtime s[96:97]")


def stamp_out(wgsel):
    if not STAMP:
        return
    n = NST[0]
    NST[0] = 0
    if STAMP == 3:
        e("  s_memrealtime s[98:99]")
        e("  s_load_dwordx2 s[56:57], s[0:1], 48")
        e("  s_waitcnt lgkmcnt(0) vmcnt(0)")
        e("  s_cmp_lg_u32 s39, 0")
        e(f"  s_cbranch_scc1 L_nostamp_{wgsel}")
        e("  s_mov_b32 s58, 0x10000000")
        e("  s_mov_b32 s59, 0x00020000")
        e("  s_and_b32 s57, s57, 0xffff")
        e("  s_lshl_b32 s62, s2, 3")
        e(f"  s_add_u32 s62, s62, {0x8000000 + (4096 if wgsel == WGSEL2 else 0)}")
        e("  v_mov_b32 v240, s62")
        e("  v_mov_b32 v242, s96")
        e("  v_mov_b32 v243, s98")
        e("  buffer_store_dwordx2 v[242:243], v240, s[56:59], 0 offen")
        e(f"L_nostamp_{wgsel}:")
        return
    e("  s_memrealtime s[98:99]")
    e("  s_waitcnt lgkmcnt(0) vmcnt(0)")
    e(f"  s_cmp_lg_u32 s2, {wgsel}")
    e(f"  s_cbranch_scc1 L_nostamp_{wgsel}")
    e("  s_cmp_lg_u32 s39, 0")
    e(f"  s_cbranch_scc1 L_nostamp_{wgsel}")
    if STAMP == 2 and wgsel == WGSEL1:
        e("  s_load_dwordx2 s[56:57], s[0:1], 48")
        e("  s_waitcnt lgkmcnt(0)")
        e("  s_mov_b32 s58, 0x10000000")
        e("  v_mov_b32 v240, 0x8000000")
    else:
        e("  s_load_dwordx2 s[56:57], s[0:1], 40")
        e("  s_waitcnt lgkmcnt(0)")
        e("  s_mov_b32 s58, 256")
        e("  v_mov_b32 v240, 0")
    e("  s_mov_b32 s59, 0x00020000")
    e("  s_and_b32 s57, s57, 0xffff")
    if STAMP == 2 and wgsel == WGSEL2:
        e("  s_load_dwordx2 s[60:61], s[0:1], 48")
        e("  s_waitcnt lgkmcnt(0)")
        e("  s_mov_b32 s62, 0x10000000")
        e("  s_mov_b32 s63, 0x00020000")
        e("  s_and_b32 s61, s61, 0xffff")
        e("  v_lshlrev_b32 v242, 2, v1")
        e("  v_add_u32 v243, 0x8000000, v242")
        e("  buffer_load_dword v244, v243, s[60:63], 0 offen sc0 sc1")
        e("  s_waitcnt vmcnt(0)")
        e("  v_cmp_gt_u32 vcc, 16, v1")
        e("  s_and_saveexec_b64 s[60:61], vcc")
        e("  buffer_store_dword v244, v242, s[56:59], 0 offen")
        e("  s_mov_b64 exec, s[60:61]")
        e(f"  s_branch L_nostamp_{wgsel}")
    for i in range(1, n):
        e(f"  s_sub_u32 s62, s{64+2*i}, s64")
        e("  v_mov_b32 v241, s62")
        e(f"  buffer_store_dword v241, v240, s[56:59], 0 offen offset:{4*(i-1)}")
    e("  s_sub_u32 s62, s98, s96")
    e("  v_mov_b32 v241, s62")
    e("  buffer_store_dword v241, v240, s[56:59], 0 offen offset:60")
    e(f"L_nostamp_{wgsel}:")


def capture(fn, *args):
    save = len(L)
    fn(*args)
    lines = L[save:]
    del L[save:]
    return lines


def split_groups(lines, key):
    groups, cur = [], []
    for ln in lines:
        cur.append(ln)
        if key in ln:
            groups.append(cur)
            cur = []
    if cur:
        groups.append(cur)
    return groups


def interleave(mfmas, fillers):
    n = len(mfmas)
    nf = len(fillers)
    fi = 0
    for i, m in enumerate(mfmas):
        e(m)
        want = ((i + 1) * nf + n - 1) // n
        while fi < want and fi < nf:
            for ln in fillers[fi]:
                e(ln)
            fi += 1
    while fi < nf:
        for ln in fillers[fi]:
            e(ln)
        fi += 1


def merge(a, b):
    out = []
    ia = ib = 0
    na, nb = len(a), len(b)
    while ia < na or ib < nb:
        if ib >= nb or (ia < na and ia * nb <= ib * na):
            out.append(a[ia]); ia += 1
        else:
            out.append(b[ib]); ib += 1
    return out


def srd(dst, base, nbytes):
    e(f"  s_mov_b32 s{dst}, s{base}")
    e(f"  s_and_b32 s{dst+1}, s{base+1}, 0xffff")
    e(f"  s_mov_b32 s{dst+2}, {nbytes}")
    e(f"  s_mov_b32 s{dst+3}, 0x00020000")


HEADER = """; Kernarg layout for this problem (56 bytes, ptrs only, base s[0:1]):
; @launch kernel=ffn_up_kernel grid=(224,1,1) block=(256,1,1) lds=%d
; @launch kernel=ffn_down_kernel grid=(256,1,1) block=(256,1,1) lds=%d
.amdgcn_target "amdgcn-amd-amdhsa--gfx950"
.text
"""

NS1 = 6
ST1 = 24576
LDS1 = NS1 * ST1
NSTAGE1 = D // 64


def k1():
    del VM[:]
    e(".globl ffn_up_kernel")
    e(".p2align 8")
    e(".type ffn_up_kernel,@function")
    e("ffn_up_kernel:")
    stamp()
    e("  s_cmp_ge_u32 s2, 224")
    e("  s_cbranch_scc1 L_k1_end")
    e("  s_load_dwordx4 s[24:27], s[0:1], 0")
    e("  s_load_dwordx4 s[28:31], s[0:1], 16")
    e("  s_load_dwordx2 s[22:23], s[0:1], 48")
    e("  s_and_b32 s32, s2, 7")
    e("  s_lshr_b32 s33, s2, 3")
    e("  s_and_b32 s34, s33, 3")
    e("  s_lshr_b32 s35, s2, 5")
    if MAP1:
        e("  s_mul_i32 s36, s32, 7")
        e("  s_add_u32 s36, s36, s35")
    else:
        e("  s_lshl_b32 s36, s35, 3")
        e("  s_add_u32 s36, s36, s32")
    e(f"  s_mul_i32 s52, s34, {ROTM1}")
    if not ROT:
        e("  s_mov_b32 s52, 0")
    e("  s_lshl_b32 s37, s34, 6")
    e("  s_lshl_b32 s38, s36, 6")
    e("  v_and_b32 v1, 63, v0")
    e("  v_lshrrev_b32 v2, 6, v0")
    e("  v_lshrrev_b32 v3, 3, v1")
    e("  v_readfirstlane_b32 s39, v2")
    e("  v_and_b32 v4, 7, v1")
    e("  s_lshl_b32 s40, s39, 4")
    e("  s_add_u32 s41, s40, s37")
    e("  v_add_u32 v5, s41, v3")
    e("  v_lshlrev_b32 v5, 11, v5")
    e("  v_xor_b32 v6, v4, v3")
    e("  v_lshlrev_b32 v6, 4, v6")
    e("  v_add_u32 v10, v5, v6")
    e("  v_add_u32 v11, 16384, v10")
    e("  v_add_u32 v5, s40, v3")
    e("  s_movk_i32 s42, 7168")
    e("  v_mul_lo_u32 v5, v5, s42")
    e("  s_lshl_b32 s43, s38, 1")
    e("  v_add_u32 v5, s43, v5")
    e("  v_and_b32 v6, 3, v3")
    e("  v_xor_b32 v7, v4, v6")
    e("  v_lshlrev_b32 v7, 4, v7")
    e("  v_add_u32 v12, v5, v7")
    e("  v_xor_b32 v7, 4, v6")
    e("  v_xor_b32 v7, v4, v7")
    e("  v_lshlrev_b32 v7, 4, v7")
    e("  v_add_u32 v13, v5, v7")
    e("  v_add_u32 v13, 57344, v13")
    e("  s_lshl_b32 s44, s39, 11")
    e("  s_lshl_b32 s45, s33, 2")
    e("  s_add_u32 s45, s45, s39")
    e("  s_lshl_b32 s46, s45, 13")
    e("  v_lshlrev_b32 v5, 7, v1")
    e("  v_add_u32 v28, s46, v5")
    e("  s_lshl_b32 s46, s45, 5")
    e("  v_lshrrev_b32 v5, 1, v1")
    e("  v_add_u32 v5, s46, v5")
    e("  v_lshlrev_b32 v5, 11, v5")
    e("  v_and_b32 v6, 1, v1")
    e("  v_lshlrev_b32 v6, 7, v6")
    e("  v_add_u32 v5, v5, v6")
    e("  s_lshl_b32 s46, s32, 8")
    e("  v_add_u32 v29, s46, v5")
    e("  s_waitcnt lgkmcnt(0)")
    srd(4, 24, X_BYTES)
    srd(8, 26, W_BYTES)
    srd(12, 28, W_BYTES)

    def issue(stage):
        slot = stage % NS1
        sb = slot * ST1
        e(f"  s_add_u32 s53, s52, {stage}")
        e("  s_and_b32 s53, s53, 15")
        e("  s_lshl_b32 s48, s53, 7")
        e(f"  s_mul_i32 s49, s53, {64*7168}")
        nt = " nt" if stage < NTS1 else ""
        for mat in range(2):
            for j in range(2):
                e(f"  s_add_u32 m0, s44, {sb + 8192 + mat*8192 + j*1024}")
                e("  s_nop 0")
                e(f"  buffer_load_dwordx4 v{12+j}, s[{8+4*mat}:{11+4*mat}], s49 offen{nt} lds")
                vm_issue(("st", stage))
        for j in range(2):
            e(f"  s_add_u32 m0, s44, {sb + j*1024}")
            e("  s_nop 0")
            e(f"  buffer_load_dwordx4 v{10+j}, s[4:7], s48 offen lds")
            vm_issue(("st", stage))

    stamp()
    if PFX:
        e("  buffer_load_dword v30, v28, s[4:7], 0 offen")
        vm_issue("pf")
    issue(0)
    srd(16, 22, H_BYTES)
    srd(24, 30, W_BYTES)
    e("  s_lshr_b32 s45, s39, 1")
    e("  s_and_b32 s46, s39, 1")
    e("  v_and_b32 v5, 15, v1")
    e("  s_lshl_b32 s47, s45, 5")
    e("  v_add_u32 v5, s47, v5")
    e("  v_lshlrev_b32 v5, 7, v5")
    e("  v_lshrrev_b32 v6, 4, v1")
    e("  v_xor_b32 v7, v6, v4")
    e("  v_lshlrev_b32 v8, 4, v7")
    e("  v_add_u32 v14, v5, v8")
    e("  v_xor_b32 v7, 4, v7")
    e("  v_lshlrev_b32 v8, 4, v7")
    e("  v_add_u32 v15, v5, v8")
    e("  v_lshrrev_b32 v7, 2, v1")
    e("  v_and_b32 v7, 3, v7")
    e("  v_lshlrev_b32 v8, 3, v6")
    e("  v_add_u32 v8, v8, v7")
    e("  v_lshlrev_b32 v8, 7, v8")
    e("  v_and_b32 v9, 1, v1")
    e("  v_lshlrev_b32 v9, 3, v9")
    e("  v_add_u32 v8, v8, v9")
    e("  v_add_u32 v8, 8192, v8")
    e("  v_and_b32 v9, 1, v6")
    e("  v_lshlrev_b32 v9, 2, v9")
    e("  v_or_b32 v9, v9, v7")
    e("  v_lshrrev_b32 v5, 1, v1")
    e("  v_and_b32 v5, 1, v5")
    e("  s_lshl_b32 s47, s46, 2")
    e("  v_add_u32 v5, s47, v5")
    e("  v_xor_b32 v7, v5, v9")
    e("  v_lshlrev_b32 v7, 4, v7")
    e("  v_add_u32 v16, v8, v7")
    e("  v_add_u32 v5, 2, v5")
    e("  v_xor_b32 v7, v5, v9")
    e("  v_lshlrev_b32 v7, 4, v7")
    e("  v_add_u32 v17, v8, v7")
    for i in range(4):
        e(f"  v_add_u32 v{18+i}, 49152, v{14+i}")
        e(f"  v_add_u32 v{22+i}, 98304, v{14+i}")
    for i in range(32):
        e(f"  v_mov_b32 v{32+i}, 0")

    def acc(mat, mi, ni):
        b = 32 + ((mat * 2 + mi) * 2 + ni) * 4
        return f"v[{b}:{b+3}]"

    def xf(fs, ks, mi):
        return 64 + fs * 48 + ks * 24 + mi * 4

    def wf(fs, ks, mat, ni):
        return 64 + fs * 48 + ks * 24 + 8 + (mat * 2 + ni) * 4

    def reads(stage):
        slot = stage % NS1
        grp = slot // 2
        ob = (slot % 2) * ST1
        vx = [14 + 4 * grp, 15 + 4 * grp]
        vw = [16 + 4 * grp, 17 + 4 * grp]
        fs = stage % 2
        for ks in range(2):
            for mi in range(2):
                bb = xf(fs, ks, mi)
                e(f"  ds_read_b128 v[{bb}:{bb+3}], v{vx[ks]} offset:{ob + mi*2048}")
            for mat in range(2):
                for ni in range(2):
                    bb = wf(fs, ks, mat, ni)
                    for hf in range(2):
                        off = ob + mat * 8192 + ks * 4096 + hf * 512
                        e(f"  ds_read_b64_tr_b16 v[{bb+2*hf}:{bb+2*hf+1}], v{vw[ni]} offset:{off}")

    for st in range(1, LI1):
        issue(st)
    nxt = LI1
    stamp()
    e(f"  s_waitcnt vmcnt({vm_wait_for(('st', 0))})")
    e("  s_barrier")
    reads(0)
    for s in range(NSTAGE1):
        fill = []
        if s + 1 < NSTAGE1:
            e(f"  s_waitcnt vmcnt({vm_wait_for(('st', s + 1))}) lgkmcnt(0)")
            e("  s_barrier")
            if s in (0, 1, 2, 4, 8, 12, 14):
                stamp()
            dg = []
            cnt = 0
            while nxt < NSTAGE1 and nxt <= s + LA1 and cnt < 2:
                dg += split_groups(capture(issue, nxt), "buffer_load")
                nxt += 1
                cnt += 1
            if PFD and s == PFD_STAGE:
                nt = " nt" if PFD_NT else ""
                dg.append([f"  buffer_load_dword v31, v29, s[24:27], 0 offen{nt}"])
                vm_issue("pf")
            rg = [[ln] for ln in capture(reads, s + 1)]
            fill = merge(rg, dg)
        else:
            e("  s_waitcnt lgkmcnt(0)")
        fs = s % 2
        mf = []
        for ks in range(2):
            for mat in range(2):
                for ni in range(2):
                    for mi in range(2):
                        w = wf(fs, ks, mat, ni)
                        x = xf(fs, ks, mi)
                        ac = acc(mat, mi, ni)
                        mf.append(f"  v_mfma_f32_16x16x32_bf16 {ac}, v[{w}:{w+3}], v[{x}:{x+3}], {ac}")
        interleave(mf, fill)
    stamp()
    e("  v_and_b32 v5, 15, v1")
    e("  s_lshl_b32 s47, s45, 5")
    e("  s_add_u32 s47, s47, s37")
    e("  v_add_u32 v5, s47, v5")
    e("  v_mul_lo_u32 v5, v5, s42")
    e("  v_lshrrev_b32 v6, 4, v1")
    e("  v_lshlrev_b32 v6, 3, v6")
    e("  s_lshl_b32 s47, s46, 6")
    e("  s_add_u32 s47, s47, s43")
    e("  v_add_u32 v6, s47, v6")
    e("  v_add_u32 v26, v5, v6")
    e("  v_add_u32 v27, 114688, v26")
    e("  s_mov_b32 s50, 0xbfb8aa3b")
    e("  s_mov_b32 s51, 0xffff0000")
    e("  s_nop 7")
    for mi in range(2):
        for ni in range(2):
            g = 32 + ((0 * 2 + mi) * 2 + ni) * 4
            u = 32 + ((1 * 2 + mi) * 2 + ni) * 4
            t = 64 + (mi * 2 + ni) * 24
            e(f"  v_cvt_pk_bf16_f32 v{t+12}, v{g}, v{g+1}")
            e(f"  v_cvt_pk_bf16_f32 v{t+13}, v{g+2}, v{g+3}")
            e(f"  v_cvt_pk_bf16_f32 v{t+14}, v{u}, v{u+1}")
            e(f"  v_cvt_pk_bf16_f32 v{t+15}, v{u+2}, v{u+3}")
            for p in range(2):
                e(f"  v_lshlrev_b32 v{t+2*p}, 16, v{t+12+p}")
                e(f"  v_and_b32 v{t+2*p+1}, s51, v{t+12+p}")
                e(f"  v_lshlrev_b32 v{t+4+2*p}, 16, v{t+14+p}")
                e(f"  v_and_b32 v{t+4+2*p+1}, s51, v{t+14+p}")
            for i in range(4):
                e(f"  v_mul_f32 v{t+8+i}, s50, v{t+i}")
            for i in range(4):
                e(f"  v_exp_f32 v{t+8+i}, v{t+8+i}")
            for i in range(4):
                e(f"  v_add_f32 v{t+8+i}, 1.0, v{t+8+i}")
            for i in range(4):
                e(f"  v_rcp_f32 v{t+8+i}, v{t+8+i}")
            for i in range(4):
                e(f"  v_mul_f32 v{t+8+i}, v{t+i}, v{t+8+i}")
            e(f"  v_cvt_pk_bf16_f32 v{t+12}, v{t+8}, v{t+9}")
            e(f"  v_cvt_pk_bf16_f32 v{t+13}, v{t+10}, v{t+11}")
            for p in range(2):
                e(f"  v_lshlrev_b32 v{t+8+2*p}, 16, v{t+12+p}")
                e(f"  v_and_b32 v{t+8+2*p+1}, s51, v{t+12+p}")
            for i in range(4):
                e(f"  v_mul_f32 v{t+8+i}, v{t+8+i}, v{t+4+i}")
            e(f"  v_cvt_pk_bf16_f32 v{t+16}, v{t+8}, v{t+9}")
            e(f"  v_cvt_pk_bf16_f32 v{t+17}, v{t+10}, v{t+11}")
            e(f"  buffer_store_dwordx2 v[{t+16}:{t+17}], v{26+mi}, s[16:19], 0 offen offset:{ni*32}")
    if STAMP:
        e("  s_waitcnt vmcnt(0)")
    stamp()
    stamp_out(WGSEL1)
    e("L_k1_end:")
    e("  s_endpgm")


NS2 = 4
ST2 = 10240
WREG2 = NS2 * ST2
LDS2 = 4 * WREG2
NSTAGE2 = 896 // 64


def k2():
    del VM[:]
    assert LA2 <= NS2
    e(".globl ffn_down_kernel")
    e(".p2align 8")
    e(".type ffn_down_kernel,@function")
    e("ffn_down_kernel:")
    stamp()
    e("  s_cmp_ge_u32 s2, 256")
    e("  s_cbranch_scc1 L_k2_end")
    e("  s_load_dwordx4 s[24:27], s[0:1], 24")
    e("  s_load_dwordx2 s[28:29], s[0:1], 48")
    e("  s_and_b32 s32, s2, 7")
    e("  s_lshr_b32 s33, s2, 3")
    e("  s_lshr_b32 s34, s33, 1")
    e("  s_and_b32 s35, s33, 1")
    e("  s_lshl_b32 s36, s32, 1")
    e("  s_add_u32 s36, s36, s35")
    e("  s_lshl_b32 s37, s34, 4")
    e("  s_lshl_b32 s38, s36, 6")
    e("  v_and_b32 v1, 63, v0")
    e("  v_lshrrev_b32 v2, 6, v0")
    e("  v_lshrrev_b32 v3, 3, v1")
    e("  v_readfirstlane_b32 s39, v2")
    e("  v_and_b32 v4, 7, v1")
    e("  s_mul_i32 s40, s39, 896")
    e("  s_mul_i32 s52, s35, 7")
    e(f"  s_mul_i32 s53, s34, {ROTM2}")
    e("  s_add_u32 s52, s52, s53")
    e("  s_mul_hi_u32 s53, s52, 0x12492493")
    e("  s_mul_i32 s53, s53, 14")
    e("  s_sub_u32 s52, s52, s53")
    if not ROT:
        e("  s_mov_b32 s52, 0")
    e("  v_add_u32 v5, s37, v3")
    e("  s_movk_i32 s42, 7168")
    e("  v_mul_lo_u32 v5, v5, s42")
    e("  s_lshl_b32 s41, s40, 1")
    e("  v_add_u32 v5, s41, v5")
    e("  v_xor_b32 v6, v4, v3")
    e("  v_lshlrev_b32 v6, 4, v6")
    e("  v_add_u32 v10, v5, v6")
    e("  v_add_u32 v5, s40, v3")
    e("  v_lshlrev_b32 v5, 11, v5")
    e("  s_lshl_b32 s43, s38, 1")
    e("  v_add_u32 v5, s43, v5")
    e("  v_and_b32 v6, 3, v3")
    e("  v_xor_b32 v7, v4, v6")
    e("  v_lshlrev_b32 v7, 4, v7")
    e("  v_add_u32 v11, v5, v7")
    e("  v_xor_b32 v7, 4, v6")
    e("  v_xor_b32 v7, v4, v7")
    e("  v_lshlrev_b32 v7, 4, v7")
    e("  v_add_u32 v12, v5, v7")
    e(f"  s_mul_i32 s44, s39, {WREG2}")
    e("  s_waitcnt lgkmcnt(0)")
    srd(4, 28, H_BYTES)
    srd(8, 24, W_BYTES)

    def issue(stage):
        sb = (stage % NS2) * ST2
        e(f"  s_add_u32 s53, s52, {stage}")
        e("  s_cmp_ge_u32 s53, 28")
        e("  s_cselect_b32 s54, 28, 0")
        e("  s_sub_u32 s53, s53, s54")
        e("  s_cmp_ge_u32 s53, 14")
        e("  s_cselect_b32 s54, 14, 0")
        e("  s_sub_u32 s53, s53, s54")
        e("  s_lshl_b32 s54, s53, 7")
        e("  s_lshl_b32 s55, s53, 17")
        for i in range(2):
            e(f"  s_add_u32 s48, s54, {i*8*7168}")
            e(f"  s_add_u32 m0, s44, {sb + i*1024}")
            e("  s_nop 0")
            e("  buffer_load_dwordx4 v10, s[4:7], s48 offen lds")
            vm_issue(("st", stage))
        for i in range(8):
            e(f"  s_add_u32 s48, s55, {8*i*2048}")
            e(f"  s_add_u32 m0, s44, {sb + 2048 + i*1024}")
            e("  s_nop 0")
            e(f"  buffer_load_dwordx4 v{11 + (i & 1)}, s[8:11], s48 offen lds")
            vm_issue(("st", stage))

    stamp()
    issue(0)
    srd(16, 26, O_BYTES)
    e("  v_and_b32 v5, 15, v1")
    e("  v_lshlrev_b32 v5, 7, v5")
    e("  v_add_u32 v5, s44, v5")
    e("  v_lshrrev_b32 v6, 4, v1")
    e("  v_xor_b32 v7, v6, v4")
    e("  v_lshlrev_b32 v8, 4, v7")
    e("  v_add_u32 v14, v5, v8")
    e("  v_xor_b32 v7, 4, v7")
    e("  v_lshlrev_b32 v8, 4, v7")
    e("  v_add_u32 v15, v5, v8")
    e("  v_lshrrev_b32 v7, 2, v1")
    e("  v_and_b32 v7, 3, v7")
    e("  v_lshlrev_b32 v8, 3, v6")
    e("  v_add_u32 v8, v8, v7")
    e("  v_lshlrev_b32 v8, 7, v8")
    e("  v_and_b32 v9, 1, v1")
    e("  v_lshlrev_b32 v9, 3, v9")
    e("  v_add_u32 v8, v8, v9")
    e("  v_add_u32 v8, 2048, v8")
    e("  v_add_u32 v8, s44, v8")
    e("  v_and_b32 v9, 1, v6")
    e("  v_lshlrev_b32 v9, 2, v9")
    e("  v_or_b32 v9, v9, v7")
    e("  v_lshrrev_b32 v5, 1, v1")
    e("  v_and_b32 v5, 1, v5")
    for ni in range(4):
        if ni:
            e("  v_add_u32 v5, 2, v5")
        e("  v_xor_b32 v7, v5, v9")
        e("  v_lshlrev_b32 v7, 4, v7")
        e(f"  v_add_u32 v{16+ni}, v8, v7")
    for i in range(16):
        e(f"  v_mov_b32 v{32+i}, 0")

    def acc(ni):
        return 32 + ni * 4

    def xf(fs, ks):
        return 64 + fs * 40 + ks * 20

    def wf(fs, ks, ni):
        return 64 + fs * 40 + ks * 20 + 4 + ni * 4

    def reads(stage):
        sb = (stage % NS2) * ST2
        fs = stage % 2
        for ks in range(2):
            bb = xf(fs, ks)
            e(f"  ds_read_b128 v[{bb}:{bb+3}], v{14+ks} offset:{sb}")
            for ni in range(4):
                bb = wf(fs, ks, ni)
                for hf in range(2):
                    e(f"  ds_read_b64_tr_b16 v[{bb+2*hf}:{bb+2*hf+1}], v{16+ni} offset:{sb + ks*4096 + hf*512}")

    for st in range(1, LI2):
        issue(st)
    nxt = LI2
    stamp()
    e(f"  s_waitcnt vmcnt({vm_wait_for(('st', 0))})")
    reads(0)
    for s in range(NSTAGE2):
        fill = []
        if s + 1 < NSTAGE2:
            e(f"  s_waitcnt vmcnt({vm_wait_for(('st', s + 1))}) lgkmcnt(0)")
            if s in (0, 1, 2, 4, 8, 12):
                stamp()
            dg = []
            cnt = 0
            while nxt < NSTAGE2 and nxt <= s + LA2 and cnt < 2:
                dg += split_groups(capture(issue, nxt), "buffer_load")
                nxt += 1
                cnt += 1
            rg = [[ln] for ln in capture(reads, s + 1)]
            fill = merge(rg, dg)
        else:
            e("  s_waitcnt lgkmcnt(0)")
        fs = s % 2
        mf = []
        for ks in range(2):
            for ni in range(4):
                ac = acc(ni)
                w = wf(fs, ks, ni)
                x = xf(fs, ks)
                mf.append(f"  v_mfma_f32_16x16x32_bf16 v[{ac}:{ac+3}], v[{w}:{w+3}], v[{x}:{x+3}], v[{ac}:{ac+3}]")
        interleave(mf, fill)
    stamp()
    e("  v_lshlrev_b32 v18, 4, v1")
    e("  v_add_u32 v19, s44, v18")
    e("  s_lshl_b32 s45, s39, 10")
    e("  v_add_u32 v20, s45, v18")
    e(f"  v_add_u32 v21, {2*WREG2}, v20")
    e("  v_and_b32 v5, 15, v1")
    e("  v_add_u32 v5, s37, v5")
    e("  v_lshlrev_b32 v5, 11, v5")
    e("  s_lshl_b32 s46, s39, 5")
    e("  s_add_u32 s46, s46, s43")
    e("  v_lshrrev_b32 v6, 4, v1")
    e("  v_lshlrev_b32 v6, 3, v6")
    e("  v_add_u32 v6, s46, v6")
    e("  v_add_u32 v5, v5, v6")
    e("  s_nop 7")
    for t in range(4):
        a = 32 + t * 4
        e(f"  ds_write_b128 v19, v[{a}:{a+3}] offset:{t*1024}")
    e("  s_waitcnt lgkmcnt(0)")
    e("  s_barrier")
    for r in range(2):
        e(f"  ds_read_b128 v[{64+4*r}:{67+4*r}], v20 offset:{r*WREG2}")
    for r in range(2):
        e(f"  ds_read_b128 v[{72+4*r}:{75+4*r}], v21 offset:{r*WREG2}")
    e("  s_waitcnt lgkmcnt(0)")
    for i in range(4):
        e(f"  v_add_f32 v{64+i}, v{64+i}, v{68+i}")
        e(f"  v_add_f32 v{72+i}, v{72+i}, v{76+i}")
    for i in range(4):
        e(f"  v_add_f32 v{64+i}, v{64+i}, v{72+i}")
    e("  v_cvt_pk_bf16_f32 v80, v64, v65")
    e("  v_cvt_pk_bf16_f32 v81, v66, v67")
    e("  buffer_store_dwordx2 v[80:81], v5, s[16:19], 0 offen")
    if STAMP:
        e("  s_waitcnt vmcnt(0)")
    stamp()
    stamp_out(WGSEL2)
    e("L_k2_end:")
    e("  s_endpgm")


def kd(name, nv, ns):
    acc_off = ((nv + 3) // 4) * 4
    e(f".amdhsa_kernel {name}")
    e(f"  .amdhsa_next_free_vgpr {nv}")
    e(f"  .amdhsa_next_free_sgpr {ns}")
    e(f"  .amdhsa_accum_offset {acc_off}")
    e("  .amdhsa_group_segment_fixed_size 0")
    e("  .amdhsa_kernarg_size 56")
    e("  .amdhsa_user_sgpr_count 2")
    e("  .amdhsa_user_sgpr_kernarg_segment_ptr 1")
    e("  .amdhsa_system_sgpr_workgroup_id_x 1")
    e(".end_amdhsa_kernel")


L.append(HEADER % (LDS1, LDS2))
k1()
k2()
e('.section .rodata,"a"')
e(".p2align 6")
kd("ffn_up_kernel", 248 if STAMP else 160, 102 if STAMP else 64)
e(".p2align 6")
kd("ffn_down_kernel", 248 if STAMP else 144, 102 if STAMP else 64)
open(OUT, "w").write("\n".join(L) + "\n")
print("wrote", OUT, len(L), "lines")
```

```python
import sys, os

OUT = sys.argv[1] if len(sys.argv) > 1 else "standalone__swiglu_ffn__sampling.s"


def env(name, dflt):
    return int(os.environ.get(name, str(dflt)))


STAMP = env("STAMP", 0)
WGSEL1 = env("WGSEL1", 0)
WGSEL2 = env("WGSEL2", 1)
ROT = env("ROT", 1)
LA1 = env("LA1", 5)
LA2 = env("LA2", 4)
LI1 = env("LI1", 3)
LI2 = env("LI2", 3)
NTS1 = env("NTS1", 0)
NTS2 = env("NTS2", 0)
PFX = env("PFX", 1)
PFD = env("PFD", 0)
PFD_STAGE = env("PFD_STAGE", 5)
PFD_NT = env("PFD_NT", 1)
PFH = env("PFH", 0)
MAP1 = env("MAP1", 0)
ROTM1 = env("ROTM1", 4)
ROTM2 = env("ROTM2", 1)
MAP2 = env("MAP2", 0)

M, D, F = 256, 1024, 3584
X_BYTES = M * D * 2
W_BYTES = D * F * 2
H_BYTES = M * F * 2
O_BYTES = M * D * 2

L = []
NST = [0]
VM = []


def e(s=""):
    L.append(s)


def vm_issue(tag):
    VM.append(tag)


def vm_wait_for(tag):
    last = max(i for i, t in enumerate(VM) if t == tag)
    n = len(VM) - 1 - last
    assert n <= 63
    return n


def stamp():
    if STAMP:
        i = NST[0]
        NST[0] += 1
        e(f"  s_memtime s[{64+2*i}:{65+2*i}]")
        if i == 0:
            e("  s_memrealtime s[96:97]")


def stamp_out(wgsel):
    if not STAMP:
        return
    n = NST[0]
    NST[0] = 0
    if STAMP == 3:
        e("  s_memrealtime s[98:99]")
        e("  s_load_dwordx2 s[56:57], s[0:1], 48")
        e("  s_waitcnt lgkmcnt(0) vmcnt(0)")
        e("  s_cmp_lg_u32 s39, 0")
        e(f"  s_cbranch_scc1 L_nostamp_{wgsel}")
        e("  s_mov_b32 s58, 0x10000000")
        e("  s_mov_b32 s59, 0x00020000")
        e("  s_and_b32 s57, s57, 0xffff")
        e("  s_lshl_b32 s62, s2, 3")
        e(f"  s_add_u32 s62, s62, {0x8000000 + (4096 if wgsel == WGSEL2 else 0)}")
        e("  v_mov_b32 v240, s62")
        e("  v_mov_b32 v242, s96")
        e("  v_mov_b32 v243, s98")
        e("  buffer_store_dwordx2 v[242:243], v240, s[56:59], 0 offen")
        e(f"L_nostamp_{wgsel}:")
        return
    e("  s_memrealtime s[98:99]")
    e("  s_waitcnt lgkmcnt(0) vmcnt(0)")
    e(f"  s_cmp_lg_u32 s2, {wgsel}")
    e(f"  s_cbranch_scc1 L_nostamp_{wgsel}")
    e("  s_cmp_lg_u32 s39, 0")
    e(f"  s_cbranch_scc1 L_nostamp_{wgsel}")
    if STAMP == 2 and wgsel == WGSEL1:
        e("  s_load_dwordx2 s[56:57], s[0:1], 48")
        e("  s_waitcnt lgkmcnt(0)")
        e("  s_mov_b32 s58, 0x10000000")
        e("  v_mov_b32 v240, 0x8000000")
    else:
        e("  s_load_dwordx2 s[56:57], s[0:1], 40")
        e("  s_waitcnt lgkmcnt(0)")
        e("  s_mov_b32 s58, 256")
        e("  v_mov_b32 v240, 0")
    e("  s_mov_b32 s59, 0x00020000")
    e("  s_and_b32 s57, s57, 0xffff")
    if STAMP == 2 and wgsel == WGSEL2:
        e("  s_load_dwordx2 s[60:61], s[0:1], 48")
        e("  s_waitcnt lgkmcnt(0)")
        e("  s_mov_b32 s62, 0x10000000")
        e("  s_mov_b32 s63, 0x00020000")
        e("  s_and_b32 s61, s61, 0xffff")
        e("  v_lshlrev_b32 v242, 2, v1")
        e("  v_add_u32 v243, 0x8000000, v242")
        e("  buffer_load_dword v244, v243, s[60:63], 0 offen sc0 sc1")
        e("  s_waitcnt vmcnt(0)")
        e("  v_cmp_gt_u32 vcc, 16, v1")
        e("  s_and_saveexec_b64 s[60:61], vcc")
        e("  buffer_store_dword v244, v242, s[56:59], 0 offen")
        e("  s_mov_b64 exec, s[60:61]")
        e(f"  s_branch L_nostamp_{wgsel}")
    for i in range(1, n):
        e(f"  s_sub_u32 s62, s{64+2*i}, s64")
        e("  v_mov_b32 v241, s62")
        e(f"  buffer_store_dword v241, v240, s[56:59], 0 offen offset:{4*(i-1)}")
    e("  s_sub_u32 s62, s98, s96")
    e("  v_mov_b32 v241, s62")
    e("  buffer_store_dword v241, v240, s[56:59], 0 offen offset:60")
    e(f"L_nostamp_{wgsel}:")


def capture(fn, *args):
    save = len(L)
    fn(*args)
    lines = L[save:]
    del L[save:]
    return lines


def split_groups(lines, key):
    groups, cur = [], []
    for ln in lines:
        cur.append(ln)
        if key in ln:
            groups.append(cur)
            cur = []
    if cur:
        groups.append(cur)
    return groups


def interleave(mfmas, fillers):
    n = len(mfmas)
    nf = len(fillers)
    fi = 0
    for i, m in enumerate(mfmas):
        e(m)
        want = ((i + 1) * nf + n - 1) // n
        while fi < want and fi < nf:
            for ln in fillers[fi]:
                e(ln)
            fi += 1
    while fi < nf:
        for ln in fillers[fi]:
            e(ln)
        fi += 1


def merge(a, b):
    out = []
    ia = ib = 0
    na, nb = len(a), len(b)
    while ia < na or ib < nb:
        if ib >= nb or (ia < na and ia * nb <= ib * na):
            out.append(a[ia]); ia += 1
        else:
            out.append(b[ib]); ib += 1
    return out


def srd(dst, base, nbytes):
    e(f"  s_mov_b32 s{dst}, s{base}")
    e(f"  s_and_b32 s{dst+1}, s{base+1}, 0xffff")
    e(f"  s_mov_b32 s{dst+2}, {nbytes}")
    e(f"  s_mov_b32 s{dst+3}, 0x00020000")


HEADER = """; Kernarg layout for this problem (56 bytes, ptrs only, base s[0:1]):
; @launch kernel=ffn_up_kernel grid=(224,1,1) block=(256,1,1) lds=%d
; @launch kernel=ffn_down_kernel grid=(256,1,1) block=(256,1,1) lds=%d
.amdgcn_target "amdgcn-amd-amdhsa--gfx950"
.text
"""

NS1 = 6
ST1 = 24576
LDS1 = NS1 * ST1
NSTAGE1 = D // 64


def k1():
    del VM[:]
    e(".globl ffn_up_kernel")
    e(".p2align 8")
    e(".type ffn_up_kernel,@function")
    e("ffn_up_kernel:")
    stamp()
    e("  s_cmp_ge_u32 s2, 224")
    e("  s_cbranch_scc1 L_k1_end")
    e("  s_load_dwordx4 s[24:27], s[0:1], 0")
    e("  s_load_dwordx4 s[28:31], s[0:1], 16")
    e("  s_load_dwordx2 s[22:23], s[0:1], 48")
    e("  s_and_b32 s32, s2, 7")
    e("  s_lshr_b32 s33, s2, 3")
    e("  s_and_b32 s34, s33, 3")
    e("  s_lshr_b32 s35, s2, 5")
    if MAP1:
        e("  s_mul_i32 s36, s32, 7")
        e("  s_add_u32 s36, s36, s35")
    else:
        e("  s_lshl_b32 s36, s35, 3")
        e("  s_add_u32 s36, s36, s32")
    e(f"  s_mul_i32 s52, s34, {ROTM1}")
    if not ROT:
        e("  s_mov_b32 s52, 0")
    e("  s_lshl_b32 s37, s34, 6")
    e("  s_lshl_b32 s38, s36, 6")
    e("  v_and_b32 v1, 63, v0")
    e("  v_lshrrev_b32 v2, 6, v0")
    e("  v_lshrrev_b32 v3, 3, v1")
    e("  v_readfirstlane_b32 s39, v2")
    e("  v_and_b32 v4, 7, v1")
    e("  s_lshl_b32 s40, s39, 4")
    e("  s_add_u32 s41, s40, s37")
    e("  v_add_u32 v5, s41, v3")
    e("  v_lshlrev_b32 v5, 11, v5")
    e("  v_xor_b32 v6, v4, v3")
    e("  v_lshlrev_b32 v6, 4, v6")
    e("  v_add_u32 v10, v5, v6")
    e("  v_add_u32 v11, 16384, v10")
    e("  v_add_u32 v5, s40, v3")
    e("  s_movk_i32 s42, 7168")
    e("  v_mul_lo_u32 v5, v5, s42")
    e("  s_lshl_b32 s43, s38, 1")
    e("  v_add_u32 v5, s43, v5")
    e("  v_and_b32 v6, 3, v3")
    e("  v_xor_b32 v7, v4, v6")
    e("  v_lshlrev_b32 v7, 4, v7")
    e("  v_add_u32 v12, v5, v7")
    e("  v_xor_b32 v7, 4, v6")
    e("  v_xor_b32 v7, v4, v7")
    e("  v_lshlrev_b32 v7, 4, v7")
    e("  v_add_u32 v13, v5, v7")
    e("  v_add_u32 v13, 57344, v13")
    e("  s_lshl_b32 s44, s39, 11")
    e("  s_lshl_b32 s45, s33, 2")
    e("  s_add_u32 s45, s45, s39")
    e("  s_lshl_b32 s46, s45, 13")
    e("  v_lshlrev_b32 v5, 7, v1")
    e("  v_add_u32 v28, s46, v5")
    e("  s_lshl_b32 s46, s45, 5")
    e("  v_lshrrev_b32 v5, 1, v1")
    e("  v_add_u32 v5, s46, v5")
    e("  v_lshlrev_b32 v5, 11, v5")
    e("  v_and_b32 v6, 1, v1")
    e("  v_lshlrev_b32 v6, 7, v6")
    e("  v_add_u32 v5, v5, v6")
    e("  s_lshl_b32 s46, s32, 8")
    e("  v_add_u32 v29, s46, v5")
    e("  s_waitcnt lgkmcnt(0)")
    srd(4, 24, X_BYTES)
    srd(8, 26, W_BYTES)
    srd(12, 28, W_BYTES)

    def issue(stage):
        slot = stage % NS1
        sb = slot * ST1
        e(f"  s_add_u32 s53, s52, {stage}")
        e("  s_and_b32 s53, s53, 15")
        e("  s_lshl_b32 s48, s53, 7")
        e(f"  s_mul_i32 s49, s53, {64*7168}")
        nt = " nt" if stage < NTS1 else ""
        for mat in range(2):
            for j in range(2):
                e(f"  s_add_u32 m0, s44, {sb + 8192 + mat*8192 + j*1024}")
                e("  s_nop 0")
                e(f"  buffer_load_dwordx4 v{12+j}, s[{8+4*mat}:{11+4*mat}], s49 offen{nt} lds")
                vm_issue(("st", stage))
        for j in range(2):
            e(f"  s_add_u32 m0, s44, {sb + j*1024}")
            e("  s_nop 0")
            e(f"  buffer_load_dwordx4 v{10+j}, s[4:7], s48 offen lds")
            vm_issue(("st", stage))

    stamp()
    if PFX:
        e("  buffer_load_dword v30, v28, s[4:7], 0 offen")
        vm_issue("pf")
    issue(0)
    srd(16, 22, H_BYTES)
    srd(24, 30, W_BYTES)
    e("  s_lshr_b32 s45, s39, 1")
    e("  s_and_b32 s46, s39, 1")
    e("  v_and_b32 v5, 15, v1")
    e("  s_lshl_b32 s47, s45, 5")
    e("  v_add_u32 v5, s47, v5")
    e("  v_lshlrev_b32 v5, 7, v5")
    e("  v_lshrrev_b32 v6, 4, v1")
    e("  v_xor_b32 v7, v6, v4")
    e("  v_lshlrev_b32 v8, 4, v7")
    e("  v_add_u32 v14, v5, v8")
    e("  v_xor_b32 v7, 4, v7")
    e("  v_lshlrev_b32 v8, 4, v7")
    e("  v_add_u32 v15, v5, v8")
    e("  v_lshrrev_b32 v7, 2, v1")
    e("  v_and_b32 v7, 3, v7")
    e("  v_lshlrev_b32 v8, 3, v6")
    e("  v_add_u32 v8, v8, v7")
    e("  v_lshlrev_b32 v8, 7, v8")
    e("  v_and_b32 v9, 1, v1")
    e("  v_lshlrev_b32 v9, 3, v9")
    e("  v_add_u32 v8, v8, v9")
    e("  v_add_u32 v8, 8192, v8")
    e("  v_and_b32 v9, 1, v6")
    e("  v_lshlrev_b32 v9, 2, v9")
    e("  v_or_b32 v9, v9, v7")
    e("  v_lshrrev_b32 v5, 1, v1")
    e("  v_and_b32 v5, 1, v5")
    e("  s_lshl_b32 s47, s46, 2")
    e("  v_add_u32 v5, s47, v5")
    e("  v_xor_b32 v7, v5, v9")
    e("  v_lshlrev_b32 v7, 4, v7")
    e("  v_add_u32 v16, v8, v7")
    e("  v_add_u32 v5, 2, v5")
    e("  v_xor_b32 v7, v5, v9")
    e("  v_lshlrev_b32 v7, 4, v7")
    e("  v_add_u32 v17, v8, v7")
    for i in range(4):
        e(f"  v_add_u32 v{18+i}, 49152, v{14+i}")
        e(f"  v_add_u32 v{22+i}, 98304, v{14+i}")
    for i in range(32):
        e(f"  v_mov_b32 v{32+i}, 0")

    def acc(mat, mi, ni):
        b = 32 + ((mat * 2 + mi) * 2 + ni) * 4
        return f"v[{b}:{b+3}]"

    def xf(fs, ks, mi):
        return 64 + fs * 48 + ks * 24 + mi * 4

    def wf(fs, ks, mat, ni):
        return 64 + fs * 48 + ks * 24 + 8 + (mat * 2 + ni) * 4

    def reads(stage):
        slot = stage % NS1
        grp = slot // 2
        ob = (slot % 2) * ST1
        vx = [14 + 4 * grp, 15 + 4 * grp]
        vw = [16 + 4 * grp, 17 + 4 * grp]
        fs = stage % 2
        for ks in range(2):
            for mi in range(2):
                bb = xf(fs, ks, mi)
                e(f"  ds_read_b128 v[{bb}:{bb+3}], v{vx[ks]} offset:{ob + mi*2048}")
            for mat in range(2):
                for ni in range(2):
                    bb = wf(fs, ks, mat, ni)
                    for hf in range(2):
                        off = ob + mat * 8192 + ks * 4096 + hf * 512
                        e(f"  ds_read_b64_tr_b16 v[{bb+2*hf}:{bb+2*hf+1}], v{vw[ni]} offset:{off}")

    for st in range(1, LI1):
        issue(st)
    nxt = LI1
    stamp()
    e(f"  s_waitcnt vmcnt({vm_wait_for(('st', 0))})")
    e("  s_barrier")
    reads(0)
    for s in range(NSTAGE1):
        fill = []
        if s + 1 < NSTAGE1:
            e(f"  s_waitcnt vmcnt({vm_wait_for(('st', s + 1))}) lgkmcnt(0)")
            e("  s_barrier")
            if s in (0, 1, 2, 4, 8, 12, 14):
                stamp()
            dg = []
            cnt = 0
            while nxt < NSTAGE1 and nxt <= s + LA1 and cnt < 2:
                dg += split_groups(capture(issue, nxt), "buffer_load")
                nxt += 1
                cnt += 1
            if PFD and s == PFD_STAGE:
                nt = " nt" if PFD_NT else ""
                dg.append([f"  buffer_load_dword v31, v29, s[24:27], 0 offen{nt}"])
                vm_issue("pf")
            rg = [[ln] for ln in capture(reads, s + 1)]
            fill = merge(rg, dg)
        else:
            e("  s_waitcnt lgkmcnt(0)")
        fs = s % 2
        mf = []
        for ks in range(2):
            for mat in range(2):
                for ni in range(2):
                    for mi in range(2):
                        w = wf(fs, ks, mat, ni)
                        x = xf(fs, ks, mi)
                        ac = acc(mat, mi, ni)
                        mf.append(f"  v_mfma_f32_16x16x32_bf16 {ac}, v[{w}:{w+3}], v[{x}:{x+3}], {ac}")
        interleave(mf, fill)
    stamp()
    e("  v_and_b32 v5, 15, v1")
    e("  s_lshl_b32 s47, s45, 5")
    e("  s_add_u32 s47, s47, s37")
    e("  v_add_u32 v5, s47, v5")
    e("  v_mul_lo_u32 v5, v5, s42")
    e("  v_lshrrev_b32 v6, 4, v1")
    e("  v_lshlrev_b32 v6, 3, v6")
    e("  s_lshl_b32 s47, s46, 6")
    e("  s_add_u32 s47, s47, s43")
    e("  v_add_u32 v6, s47, v6")
    e("  v_add_u32 v26, v5, v6")
    e("  v_add_u32 v27, 114688, v26")
    e("  s_mov_b32 s50, 0xbfb8aa3b")
    e("  s_mov_b32 s51, 0xffff0000")
    e("  s_nop 7")
    for mi in range(2):
        for ni in range(2):
            g = 32 + ((0 * 2 + mi) * 2 + ni) * 4
            u = 32 + ((1 * 2 + mi) * 2 + ni) * 4
            t = 64 + (mi * 2 + ni) * 24
            e(f"  v_cvt_pk_bf16_f32 v{t+12}, v{g}, v{g+1}")
            e(f"  v_cvt_pk_bf16_f32 v{t+13}, v{g+2}, v{g+3}")
            e(f"  v_cvt_pk_bf16_f32 v{t+14}, v{u}, v{u+1}")
            e(f"  v_cvt_pk_bf16_f32 v{t+15}, v{u+2}, v{u+3}")
            for p in range(2):
                e(f"  v_lshlrev_b32 v{t+2*p}, 16, v{t+12+p}")
                e(f"  v_and_b32 v{t+2*p+1}, s51, v{t+12+p}")
                e(f"  v_lshlrev_b32 v{t+4+2*p}, 16, v{t+14+p}")
                e(f"  v_and_b32 v{t+4+2*p+1}, s51, v{t+14+p}")
            for i in range(4):
                e(f"  v_mul_f32 v{t+8+i}, s50, v{t+i}")
            for i in range(4):
                e(f"  v_exp_f32 v{t+8+i}, v{t+8+i}")
            for i in range(4):
                e(f"  v_add_f32 v{t+8+i}, 1.0, v{t+8+i}")
            for i in range(4):
                e(f"  v_rcp_f32 v{t+8+i}, v{t+8+i}")
            for i in range(4):
                e(f"  v_mul_f32 v{t+8+i}, v{t+i}, v{t+8+i}")
            e(f"  v_cvt_pk_bf16_f32 v{t+12}, v{t+8}, v{t+9}")
            e(f"  v_cvt_pk_bf16_f32 v{t+13}, v{t+10}, v{t+11}")
            for p in range(2):
                e(f"  v_lshlrev_b32 v{t+8+2*p}, 16, v{t+12+p}")
                e(f"  v_and_b32 v{t+8+2*p+1}, s51, v{t+12+p}")
            for i in range(4):
                e(f"  v_mul_f32 v{t+8+i}, v{t+8+i}, v{t+4+i}")
            e(f"  v_cvt_pk_bf16_f32 v{t+16}, v{t+8}, v{t+9}")
            e(f"  v_cvt_pk_bf16_f32 v{t+17}, v{t+10}, v{t+11}")
            e(f"  buffer_store_dwordx2 v[{t+16}:{t+17}], v{26+mi}, s[16:19], 0 offen offset:{ni*32}")
    if STAMP:
        e("  s_waitcnt vmcnt(0)")
    stamp()
    stamp_out(WGSEL1)
    e("L_k1_end:")
    e("  s_endpgm")


NS2 = 4
ST2 = 10240
WREG2 = NS2 * ST2
LDS2 = 4 * WREG2
NSTAGE2 = 896 // 64


def k2():
    del VM[:]
    assert LA2 <= NS2
    e(".globl ffn_down_kernel")
    e(".p2align 8")
    e(".type ffn_down_kernel,@function")
    e("ffn_down_kernel:")
    stamp()
    e("  s_cmp_ge_u32 s2, 256")
    e("  s_cbranch_scc1 L_k2_end")
    e("  s_load_dwordx4 s[24:27], s[0:1], 24")
    e("  s_load_dwordx2 s[28:29], s[0:1], 48")
    e("  s_and_b32 s32, s2, 7")
    e("  s_lshr_b32 s33, s2, 3")
    e("  s_lshr_b32 s34, s33, 1")
    e("  s_and_b32 s35, s33, 1")
    if MAP2:
        e("  s_lshl_b32 s36, s35, 3")
        e("  s_add_u32 s36, s36, s32")
    else:
        e("  s_lshl_b32 s36, s32, 1")
        e("  s_add_u32 s36, s36, s35")
    e("  s_lshl_b32 s37, s34, 4")
    e("  s_lshl_b32 s38, s36, 6")
    e("  v_and_b32 v1, 63, v0")
    e("  v_lshrrev_b32 v2, 6, v0")
    e("  v_lshrrev_b32 v3, 3, v1")
    e("  v_readfirstlane_b32 s39, v2")
    e("  v_and_b32 v4, 7, v1")
    e("  s_mul_i32 s40, s39, 896")
    e("  s_mul_i32 s52, s35, 7")
    e(f"  s_mul_i32 s53, s34, {ROTM2}")
    e("  s_add_u32 s52, s52, s53")
    e("  s_mul_hi_u32 s53, s52, 0x12492493")
    e("  s_mul_i32 s53, s53, 14")
    e("  s_sub_u32 s52, s52, s53")
    if not ROT:
        e("  s_mov_b32 s52, 0")
    e("  v_add_u32 v5, s37, v3")
    e("  s_movk_i32 s42, 7168")
    e("  v_mul_lo_u32 v5, v5, s42")
    e("  s_lshl_b32 s41, s40, 1")
    e("  v_add_u32 v5, s41, v5")
    e("  v_xor_b32 v6, v4, v3")
    e("  v_lshlrev_b32 v6, 4, v6")
    e("  v_add_u32 v10, v5, v6")
    e("  v_add_u32 v5, s40, v3")
    e("  v_lshlrev_b32 v5, 11, v5")
    e("  s_lshl_b32 s43, s38, 1")
    e("  v_add_u32 v5, s43, v5")
    e("  v_and_b32 v6, 3, v3")
    e("  v_xor_b32 v7, v4, v6")
    e("  v_lshlrev_b32 v7, 4, v7")
    e("  v_add_u32 v11, v5, v7")
    e("  v_xor_b32 v7, 4, v6")
    e("  v_xor_b32 v7, v4, v7")
    e("  v_lshlrev_b32 v7, 4, v7")
    e("  v_add_u32 v12, v5, v7")
    e(f"  s_mul_i32 s44, s39, {WREG2}")
    e("  s_waitcnt lgkmcnt(0)")
    srd(4, 28, H_BYTES)
    srd(8, 24, W_BYTES)

    def issue(stage):
        sb = (stage % NS2) * ST2
        e(f"  s_add_u32 s53, s52, {stage}")
        e("  s_cmp_ge_u32 s53, 28")
        e("  s_cselect_b32 s54, 28, 0")
        e("  s_sub_u32 s53, s53, s54")
        e("  s_cmp_ge_u32 s53, 14")
        e("  s_cselect_b32 s54, 14, 0")
        e("  s_sub_u32 s53, s53, s54")
        e("  s_lshl_b32 s54, s53, 7")
        e("  s_lshl_b32 s55, s53, 17")
        for i in range(2):
            e(f"  s_add_u32 s48, s54, {i*8*7168}")
            e(f"  s_add_u32 m0, s44, {sb + i*1024}")
            e("  s_nop 0")
            e("  buffer_load_dwordx4 v10, s[4:7], s48 offen lds")
            vm_issue(("st", stage))
        for i in range(8):
            e(f"  s_add_u32 s48, s55, {8*i*2048}")
            e(f"  s_add_u32 m0, s44, {sb + 2048 + i*1024}")
            e("  s_nop 0")
            e(f"  buffer_load_dwordx4 v{11 + (i & 1)}, s[8:11], s48 offen lds")
            vm_issue(("st", stage))

    stamp()
    issue(0)
    srd(16, 26, O_BYTES)
    e("  v_and_b32 v5, 15, v1")
    e("  v_lshlrev_b32 v5, 7, v5")
    e("  v_add_u32 v5, s44, v5")
    e("  v_lshrrev_b32 v6, 4, v1")
    e("  v_xor_b32 v7, v6, v4")
    e("  v_lshlrev_b32 v8, 4, v7")
    e("  v_add_u32 v14, v5, v8")
    e("  v_xor_b32 v7, 4, v7")
    e("  v_lshlrev_b32 v8, 4, v7")
    e("  v_add_u32 v15, v5, v8")
    e("  v_lshrrev_b32 v7, 2, v1")
    e("  v_and_b32 v7, 3, v7")
    e("  v_lshlrev_b32 v8, 3, v6")
    e("  v_add_u32 v8, v8, v7")
    e("  v_lshlrev_b32 v8, 7, v8")
    e("  v_and_b32 v9, 1, v1")
    e("  v_lshlrev_b32 v9, 3, v9")
    e("  v_add_u32 v8, v8, v9")
    e("  v_add_u32 v8, 2048, v8")
    e("  v_add_u32 v8, s44, v8")
    e("  v_and_b32 v9, 1, v6")
    e("  v_lshlrev_b32 v9, 2, v9")
    e("  v_or_b32 v9, v9, v7")
    e("  v_lshrrev_b32 v5, 1, v1")
    e("  v_and_b32 v5, 1, v5")
    for ni in range(4):
        if ni:
            e("  v_add_u32 v5, 2, v5")
        e("  v_xor_b32 v7, v5, v9")
        e("  v_lshlrev_b32 v7, 4, v7")
        e(f"  v_add_u32 v{16+ni}, v8, v7")
    for i in range(16):
        e(f"  v_mov_b32 v{32+i}, 0")

    def acc(ni):
        return 32 + ni * 4

    def xf(fs, ks):
        return 64 + fs * 40 + ks * 20

    def wf(fs, ks, ni):
        return 64 + fs * 40 + ks * 20 + 4 + ni * 4

    def reads(stage):
        sb = (stage % NS2) * ST2
        fs = stage % 2
        for ks in range(2):
            bb = xf(fs, ks)
            e(f"  ds_read_b128 v[{bb}:{bb+3}], v{14+ks} offset:{sb}")
            for ni in range(4):
                bb = wf(fs, ks, ni)
                for hf in range(2):
                    e(f"  ds_read_b64_tr_b16 v[{bb+2*hf}:{bb+2*hf+1}], v{16+ni} offset:{sb + ks*4096 + hf*512}")

    for st in range(1, LI2):
        issue(st)
    nxt = LI2
    stamp()
    e(f"  s_waitcnt vmcnt({vm_wait_for(('st', 0))})")
    reads(0)
    for s in range(NSTAGE2):
        fill = []
        if s + 1 < NSTAGE2:
            e(f"  s_waitcnt vmcnt({vm_wait_for(('st', s + 1))}) lgkmcnt(0)")
            if s in (0, 1, 2, 4, 8, 12):
                stamp()
            dg = []
            cnt = 0
            while nxt < NSTAGE2 and nxt <= s + LA2 and cnt < 2:
                dg += split_groups(capture(issue, nxt), "buffer_load")
                nxt += 1
                cnt += 1
            rg = [[ln] for ln in capture(reads, s + 1)]
            fill = merge(rg, dg)
        else:
            e("  s_waitcnt lgkmcnt(0)")
        fs = s % 2
        mf = []
        for ks in range(2):
            for ni in range(4):
                ac = acc(ni)
                w = wf(fs, ks, ni)
                x = xf(fs, ks)
                mf.append(f"  v_mfma_f32_16x16x32_bf16 v[{ac}:{ac+3}], v[{w}:{w+3}], v[{x}:{x+3}], v[{ac}:{ac+3}]")
        interleave(mf, fill)
    stamp()
    e("  v_lshlrev_b32 v18, 4, v1")
    e("  v_add_u32 v19, s44, v18")
    e("  s_lshl_b32 s45, s39, 10")
    e("  v_add_u32 v20, s45, v18")
    e(f"  v_add_u32 v21, {2*WREG2}, v20")
    e("  v_and_b32 v5, 15, v1")
    e("  v_add_u32 v5, s37, v5")
    e("  v_lshlrev_b32 v5, 11, v5")
    e("  s_lshl_b32 s46, s39, 5")
    e("  s_add_u32 s46, s46, s43")
    e("  v_lshrrev_b32 v6, 4, v1")
    e("  v_lshlrev_b32 v6, 3, v6")
    e("  v_add_u32 v6, s46, v6")
    e("  v_add_u32 v5, v5, v6")
    e("  s_nop 7")
    for t in range(4):
        a = 32 + t * 4
        e(f"  ds_write_b128 v19, v[{a}:{a+3}] offset:{t*1024}")
    e("  s_waitcnt lgkmcnt(0)")
    e("  s_barrier")
    for r in range(2):
        e(f"  ds_read_b128 v[{64+4*r}:{67+4*r}], v20 offset:{r*WREG2}")
    for r in range(2):
        e(f"  ds_read_b128 v[{72+4*r}:{75+4*r}], v21 offset:{r*WREG2}")
    e("  s_waitcnt lgkmcnt(0)")
    for i in range(4):
        e(f"  v_add_f32 v{64+i}, v{64+i}, v{68+i}")
        e(f"  v_add_f32 v{72+i}, v{72+i}, v{76+i}")
    for i in range(4):
        e(f"  v_add_f32 v{64+i}, v{64+i}, v{72+i}")
    e("  v_cvt_pk_bf16_f32 v80, v64, v65")
    e("  v_cvt_pk_bf16_f32 v81, v66, v67")
    e("  buffer_store_dwordx2 v[80:81], v5, s[16:19], 0 offen")
    if STAMP:
        e("  s_waitcnt vmcnt(0)")
    stamp()
    stamp_out(WGSEL2)
    e("L_k2_end:")
    e("  s_endpgm")


def kd(name, nv, ns):
    acc_off = ((nv + 3) // 4) * 4
    e(f".amdhsa_kernel {name}")
    e(f"  .amdhsa_next_free_vgpr {nv}")
    e(f"  .amdhsa_next_free_sgpr {ns}")
    e(f"  .amdhsa_accum_offset {acc_off}")
    e("  .amdhsa_group_segment_fixed_size 0")
    e("  .amdhsa_kernarg_size 56")
    e("  .amdhsa_user_sgpr_count 2")
    e("  .amdhsa_user_sgpr_kernarg_segment_ptr 1")
    e("  .amdhsa_system_sgpr_workgroup_id_x 1")
    e(".end_amdhsa_kernel")


L.append(HEADER % (LDS1, LDS2))
k1()
k2()
e('.section .rodata,"a"')
e(".p2align 6")
kd("ffn_up_kernel", 248 if STAMP else 160, 102 if STAMP else 64)
e(".p2align 6")
kd("ffn_down_kernel", 248 if STAMP else 144, 102 if STAMP else 64)
open(OUT, "w").write("\n".join(L) + "\n")
print("wrote", OUT, len(L), "lines")
```

```python
import sys, os

OUT = sys.argv[1] if len(sys.argv) > 1 else "standalone__swiglu_ffn__sampling.s"


def env(name, dflt):
    return int(os.environ.get(name, str(dflt)))


STAMP = env("STAMP", 0)
WGSEL1 = env("WGSEL1", 0)
WGSEL2 = env("WGSEL2", 1)
ROT = env("ROT", 1)
LA1 = env("LA1", 5)
LA2 = env("LA2", 4)
LI1 = env("LI1", 3)
LI2 = env("LI2", 3)
NTS1 = env("NTS1", 0)
NTS2 = env("NTS2", 0)
PFX = env("PFX", 1)
PFD = env("PFD", 0)
PFD_STAGE = env("PFD_STAGE", 5)
PFD_NT = env("PFD_NT", 1)
PFH = env("PFH", 0)
MAP1 = env("MAP1", 0)
ROTM1 = env("ROTM1", 4)
ROTM2 = env("ROTM2", 1)
MAP2 = env("MAP2", 0)
PFH2 = env("PFH2", 0)

M, D, F = 256, 1024, 3584
X_BYTES = M * D * 2
W_BYTES = D * F * 2
H_BYTES = M * F * 2
O_BYTES = M * D * 2

L = []
NST = [0]
VM = []


def e(s=""):
    L.append(s)


def vm_issue(tag):
    VM.append(tag)


def vm_wait_for(tag):
    last = max(i for i, t in enumerate(VM) if t == tag)
    n = len(VM) - 1 - last
    assert n <= 63
    return n


def stamp():
    if STAMP:
        i = NST[0]
        NST[0] += 1
        e(f"  s_memtime s[{64+2*i}:{65+2*i}]")
        if i == 0:
            e("  s_memrealtime s[96:97]")


def stamp_out(wgsel):
    if not STAMP:
        return
    n = NST[0]
    NST[0] = 0
    if STAMP == 3:
        e("  s_memrealtime s[98:99]")
        e("  s_load_dwordx2 s[56:57], s[0:1], 48")
        e("  s_waitcnt lgkmcnt(0) vmcnt(0)")
        e("  s_cmp_lg_u32 s39, 0")
        e(f"  s_cbranch_scc1 L_nostamp_{wgsel}")
        e("  s_mov_b32 s58, 0x10000000")
        e("  s_mov_b32 s59, 0x00020000")
        e("  s_and_b32 s57, s57, 0xffff")
        e("  s_lshl_b32 s62, s2, 3")
        e(f"  s_add_u32 s62, s62, {0x8000000 + (4096 if wgsel == WGSEL2 else 0)}")
        e("  v_mov_b32 v240, s62")
        e("  v_mov_b32 v242, s96")
        e("  v_mov_b32 v243, s98")
        e("  buffer_store_dwordx2 v[242:243], v240, s[56:59], 0 offen")
        e(f"L_nostamp_{wgsel}:")
        return
    e("  s_memrealtime s[98:99]")
    e("  s_waitcnt lgkmcnt(0) vmcnt(0)")
    e(f"  s_cmp_lg_u32 s2, {wgsel}")
    e(f"  s_cbranch_scc1 L_nostamp_{wgsel}")
    e("  s_cmp_lg_u32 s39, 0")
    e(f"  s_cbranch_scc1 L_nostamp_{wgsel}")
    if STAMP == 2 and wgsel == WGSEL1:
        e("  s_load_dwordx2 s[56:57], s[0:1], 48")
        e("  s_waitcnt lgkmcnt(0)")
        e("  s_mov_b32 s58, 0x10000000")
        e("  v_mov_b32 v240, 0x8000000")
    else:
        e("  s_load_dwordx2 s[56:57], s[0:1], 40")
        e("  s_waitcnt lgkmcnt(0)")
        e("  s_mov_b32 s58, 256")
        e("  v_mov_b32 v240, 0")
    e("  s_mov_b32 s59, 0x00020000")
    e("  s_and_b32 s57, s57, 0xffff")
    if STAMP == 2 and wgsel == WGSEL2:
        e("  s_load_dwordx2 s[60:61], s[0:1], 48")
        e("  s_waitcnt lgkmcnt(0)")
        e("  s_mov_b32 s62, 0x10000000")
        e("  s_mov_b32 s63, 0x00020000")
        e("  s_and_b32 s61, s61, 0xffff")
        e("  v_lshlrev_b32 v242, 2, v1")
        e("  v_add_u32 v243, 0x8000000, v242")
        e("  buffer_load_dword v244, v243, s[60:63], 0 offen sc0 sc1")
        e("  s_waitcnt vmcnt(0)")
        e("  v_cmp_gt_u32 vcc, 16, v1")
        e("  s_and_saveexec_b64 s[60:61], vcc")
        e("  buffer_store_dword v244, v242, s[56:59], 0 offen")
        e("  s_mov_b64 exec, s[60:61]")
        e(f"  s_branch L_nostamp_{wgsel}")
    for i in range(1, n):
        e(f"  s_sub_u32 s62, s{64+2*i}, s64")
        e("  v_mov_b32 v241, s62")
        e(f"  buffer_store_dword v241, v240, s[56:59], 0 offen offset:{4*(i-1)}")
    e("  s_sub_u32 s62, s98, s96")
    e("  v_mov_b32 v241, s62")
    e("  buffer_store_dword v241, v240, s[56:59], 0 offen offset:60")
    e(f"L_nostamp_{wgsel}:")


def capture(fn, *args):
    save = len(L)
    fn(*args)
    lines = L[save:]
    del L[save:]
    return lines


def split_groups(lines, key):
    groups, cur = [], []
    for ln in lines:
        cur.append(ln)
        if key in ln:
            groups.append(cur)
            cur = []
    if cur:
        groups.append(cur)
    return groups


def interleave(mfmas, fillers):
    n = len(mfmas)
    nf = len(fillers)
    fi = 0
    for i, m in enumerate(mfmas):
        e(m)
        want = ((i + 1) * nf + n - 1) // n
        while fi < want and fi < nf:
            for ln in fillers[fi]:
                e(ln)
            fi += 1
    while fi < nf:
        for ln in fillers[fi]:
            e(ln)
        fi += 1


def merge(a, b):
    out = []
    ia = ib = 0
    na, nb = len(a), len(b)
    while ia < na or ib < nb:
        if ib >= nb or (ia < na and ia * nb <= ib * na):
            out.append(a[ia]); ia += 1
        else:
            out.append(b[ib]); ib += 1
    return out


def srd(dst, base, nbytes):
    e(f"  s_mov_b32 s{dst}, s{base}")
    e(f"  s_and_b32 s{dst+1}, s{base+1}, 0xffff")
    e(f"  s_mov_b32 s{dst+2}, {nbytes}")
    e(f"  s_mov_b32 s{dst+3}, 0x00020000")


HEADER = """; Kernarg layout for this problem (56 bytes, ptrs only, base s[0:1]):
; @launch kernel=ffn_up_kernel grid=(224,1,1) block=(256,1,1) lds=%d
; @launch kernel=ffn_down_kernel grid=(256,1,1) block=(256,1,1) lds=%d
.amdgcn_target "amdgcn-amd-amdhsa--gfx950"
.text
"""

NS1 = 6
ST1 = 24576
LDS1 = NS1 * ST1
NSTAGE1 = D // 64


def k1():
    del VM[:]
    e(".globl ffn_up_kernel")
    e(".p2align 8")
    e(".type ffn_up_kernel,@function")
    e("ffn_up_kernel:")
    stamp()
    e("  s_cmp_ge_u32 s2, 224")
    e("  s_cbranch_scc1 L_k1_end")
    e("  s_load_dwordx4 s[24:27], s[0:1], 0")
    e("  s_load_dwordx4 s[28:31], s[0:1], 16")
    e("  s_load_dwordx2 s[22:23], s[0:1], 48")
    e("  s_and_b32 s32, s2, 7")
    e("  s_lshr_b32 s33, s2, 3")
    e("  s_and_b32 s34, s33, 3")
    e("  s_lshr_b32 s35, s2, 5")
    if MAP1:
        e("  s_mul_i32 s36, s32, 7")
        e("  s_add_u32 s36, s36, s35")
    else:
        e("  s_lshl_b32 s36, s35, 3")
        e("  s_add_u32 s36, s36, s32")
    e(f"  s_mul_i32 s52, s34, {ROTM1}")
    if not ROT:
        e("  s_mov_b32 s52, 0")
    e("  s_lshl_b32 s37, s34, 6")
    e("  s_lshl_b32 s38, s36, 6")
    e("  v_and_b32 v1, 63, v0")
    e("  v_lshrrev_b32 v2, 6, v0")
    e("  v_lshrrev_b32 v3, 3, v1")
    e("  v_readfirstlane_b32 s39, v2")
    e("  v_and_b32 v4, 7, v1")
    e("  s_lshl_b32 s40, s39, 4")
    e("  s_add_u32 s41, s40, s37")
    e("  v_add_u32 v5, s41, v3")
    e("  v_lshlrev_b32 v5, 11, v5")
    e("  v_xor_b32 v6, v4, v3")
    e("  v_lshlrev_b32 v6, 4, v6")
    e("  v_add_u32 v10, v5, v6")
    e("  v_add_u32 v11, 16384, v10")
    e("  v_add_u32 v5, s40, v3")
    e("  s_movk_i32 s42, 7168")
    e("  v_mul_lo_u32 v5, v5, s42")
    e("  s_lshl_b32 s43, s38, 1")
    e("  v_add_u32 v5, s43, v5")
    e("  v_and_b32 v6, 3, v3")
    e("  v_xor_b32 v7, v4, v6")
    e("  v_lshlrev_b32 v7, 4, v7")
    e("  v_add_u32 v12, v5, v7")
    e("  v_xor_b32 v7, 4, v6")
    e("  v_xor_b32 v7, v4, v7")
    e("  v_lshlrev_b32 v7, 4, v7")
    e("  v_add_u32 v13, v5, v7")
    e("  v_add_u32 v13, 57344, v13")
    e("  s_lshl_b32 s44, s39, 11")
    e("  s_lshl_b32 s45, s33, 2")
    e("  s_add_u32 s45, s45, s39")
    e("  s_lshl_b32 s46, s45, 13")
    e("  v_lshlrev_b32 v5, 7, v1")
    e("  v_add_u32 v28, s46, v5")
    e("  s_lshl_b32 s46, s45, 5")
    e("  v_lshrrev_b32 v5, 1, v1")
    e("  v_add_u32 v5, s46, v5")
    e("  v_lshlrev_b32 v5, 11, v5")
    e("  v_and_b32 v6, 1, v1")
    e("  v_lshlrev_b32 v6, 7, v6")
    e("  v_add_u32 v5, v5, v6")
    e("  s_lshl_b32 s46, s32, 8")
    e("  v_add_u32 v29, s46, v5")
    e("  s_waitcnt lgkmcnt(0)")
    srd(4, 24, X_BYTES)
    srd(8, 26, W_BYTES)
    srd(12, 28, W_BYTES)

    def issue(stage):
        slot = stage % NS1
        sb = slot * ST1
        e(f"  s_add_u32 s53, s52, {stage}")
        e("  s_and_b32 s53, s53, 15")
        e("  s_lshl_b32 s48, s53, 7")
        e(f"  s_mul_i32 s49, s53, {64*7168}")
        nt = " nt" if stage < NTS1 else ""
        for mat in range(2):
            for j in range(2):
                e(f"  s_add_u32 m0, s44, {sb + 8192 + mat*8192 + j*1024}")
                e("  s_nop 0")
                e(f"  buffer_load_dwordx4 v{12+j}, s[{8+4*mat}:{11+4*mat}], s49 offen{nt} lds")
                vm_issue(("st", stage))
        for j in range(2):
            e(f"  s_add_u32 m0, s44, {sb + j*1024}")
            e("  s_nop 0")
            e(f"  buffer_load_dwordx4 v{10+j}, s[4:7], s48 offen lds")
            vm_issue(("st", stage))

    stamp()
    if PFX:
        e("  buffer_load_dword v30, v28, s[4:7], 0 offen")
        vm_issue("pf")
    issue(0)
    srd(16, 22, H_BYTES)
    srd(24, 30, W_BYTES)
    e("  s_lshr_b32 s45, s39, 1")
    e("  s_and_b32 s46, s39, 1")
    e("  v_and_b32 v5, 15, v1")
    e("  s_lshl_b32 s47, s45, 5")
    e("  v_add_u32 v5, s47, v5")
    e("  v_lshlrev_b32 v5, 7, v5")
    e("  v_lshrrev_b32 v6, 4, v1")
    e("  v_xor_b32 v7, v6, v4")
    e("  v_lshlrev_b32 v8, 4, v7")
    e("  v_add_u32 v14, v5, v8")
    e("  v_xor_b32 v7, 4, v7")
    e("  v_lshlrev_b32 v8, 4, v7")
    e("  v_add_u32 v15, v5, v8")
    e("  v_lshrrev_b32 v7, 2, v1")
    e("  v_and_b32 v7, 3, v7")
    e("  v_lshlrev_b32 v8, 3, v6")
    e("  v_add_u32 v8, v8, v7")
    e("  v_lshlrev_b32 v8, 7, v8")
    e("  v_and_b32 v9, 1, v1")
    e("  v_lshlrev_b32 v9, 3, v9")
    e("  v_add_u32 v8, v8, v9")
    e("  v_add_u32 v8, 8192, v8")
    e("  v_and_b32 v9, 1, v6")
    e("  v_lshlrev_b32 v9, 2, v9")
    e("  v_or_b32 v9, v9, v7")
    e("  v_lshrrev_b32 v5, 1, v1")
    e("  v_and_b32 v5, 1, v5")
    e("  s_lshl_b32 s47, s46, 2")
    e("  v_add_u32 v5, s47, v5")
    e("  v_xor_b32 v7, v5, v9")
    e("  v_lshlrev_b32 v7, 4, v7")
    e("  v_add_u32 v16, v8, v7")
    e("  v_add_u32 v5, 2, v5")
    e("  v_xor_b32 v7, v5, v9")
    e("  v_lshlrev_b32 v7, 4, v7")
    e("  v_add_u32 v17, v8, v7")
    for i in range(4):
        e(f"  v_add_u32 v{18+i}, 49152, v{14+i}")
        e(f"  v_add_u32 v{22+i}, 98304, v{14+i}")
    for i in range(32):
        e(f"  v_mov_b32 v{32+i}, 0")

    def acc(mat, mi, ni):
        b = 32 + ((mat * 2 + mi) * 2 + ni) * 4
        return f"v[{b}:{b+3}]"

    def xf(fs, ks, mi):
        return 64 + fs * 48 + ks * 24 + mi * 4

    def wf(fs, ks, mat, ni):
        return 64 + fs * 48 + ks * 24 + 8 + (mat * 2 + ni) * 4

    def reads(stage):
        slot = stage % NS1
        grp = slot // 2
        ob = (slot % 2) * ST1
        vx = [14 + 4 * grp, 15 + 4 * grp]
        vw = [16 + 4 * grp, 17 + 4 * grp]
        fs = stage % 2
        for ks in range(2):
            for mi in range(2):
                bb = xf(fs, ks, mi)
                e(f"  ds_read_b128 v[{bb}:{bb+3}], v{vx[ks]} offset:{ob + mi*2048}")
            for mat in range(2):
                for ni in range(2):
                    bb = wf(fs, ks, mat, ni)
                    for hf in range(2):
                        off = ob + mat * 8192 + ks * 4096 + hf * 512
                        e(f"  ds_read_b64_tr_b16 v[{bb+2*hf}:{bb+2*hf+1}], v{vw[ni]} offset:{off}")

    for st in range(1, LI1):
        issue(st)
    nxt = LI1
    stamp()
    e(f"  s_waitcnt vmcnt({vm_wait_for(('st', 0))})")
    e("  s_barrier")
    reads(0)
    for s in range(NSTAGE1):
        fill = []
        if s + 1 < NSTAGE1:
            e(f"  s_waitcnt vmcnt({vm_wait_for(('st', s + 1))}) lgkmcnt(0)")
            e("  s_barrier")
            if s in (0, 1, 2, 4, 8, 12, 14):
                stamp()
            dg = []
            cnt = 0
            while nxt < NSTAGE1 and nxt <= s + LA1 and cnt < 2:
                dg += split_groups(capture(issue, nxt), "buffer_load")
                nxt += 1
                cnt += 1
            if PFD and s == PFD_STAGE:
                nt = " nt" if PFD_NT else ""
                dg.append([f"  buffer_load_dword v31, v29, s[24:27], 0 offen{nt}"])
                vm_issue("pf")
            rg = [[ln] for ln in capture(reads, s + 1)]
            fill = merge(rg, dg)
        else:
            e("  s_waitcnt lgkmcnt(0)")
        fs = s % 2
        mf = []
        for ks in range(2):
            for mat in range(2):
                for ni in range(2):
                    for mi in range(2):
                        w = wf(fs, ks, mat, ni)
                        x = xf(fs, ks, mi)
                        ac = acc(mat, mi, ni)
                        mf.append(f"  v_mfma_f32_16x16x32_bf16 {ac}, v[{w}:{w+3}], v[{x}:{x+3}], {ac}")
        interleave(mf, fill)
    stamp()
    e("  v_and_b32 v5, 15, v1")
    e("  s_lshl_b32 s47, s45, 5")
    e("  s_add_u32 s47, s47, s37")
    e("  v_add_u32 v5, s47, v5")
    e("  v_mul_lo_u32 v5, v5, s42")
    e("  v_lshrrev_b32 v6, 4, v1")
    e("  v_lshlrev_b32 v6, 3, v6")
    e("  s_lshl_b32 s47, s46, 6")
    e("  s_add_u32 s47, s47, s43")
    e("  v_add_u32 v6, s47, v6")
    e("  v_add_u32 v26, v5, v6")
    e("  v_add_u32 v27, 114688, v26")
    e("  s_mov_b32 s50, 0xbfb8aa3b")
    e("  s_mov_b32 s51, 0xffff0000")
    e("  s_nop 7")
    for mi in range(2):
        for ni in range(2):
            g = 32 + ((0 * 2 + mi) * 2 + ni) * 4
            u = 32 + ((1 * 2 + mi) * 2 + ni) * 4
            t = 64 + (mi * 2 + ni) * 24
            e(f"  v_cvt_pk_bf16_f32 v{t+12}, v{g}, v{g+1}")
            e(f"  v_cvt_pk_bf16_f32 v{t+13}, v{g+2}, v{g+3}")
            e(f"  v_cvt_pk_bf16_f32 v{t+14}, v{u}, v{u+1}")
            e(f"  v_cvt_pk_bf16_f32 v{t+15}, v{u+2}, v{u+3}")
            for p in range(2):
                e(f"  v_lshlrev_b32 v{t+2*p}, 16, v{t+12+p}")
                e(f"  v_and_b32 v{t+2*p+1}, s51, v{t+12+p}")
                e(f"  v_lshlrev_b32 v{t+4+2*p}, 16, v{t+14+p}")
                e(f"  v_and_b32 v{t+4+2*p+1}, s51, v{t+14+p}")
            for i in range(4):
                e(f"  v_mul_f32 v{t+8+i}, s50, v{t+i}")
            for i in range(4):
                e(f"  v_exp_f32 v{t+8+i}, v{t+8+i}")
            for i in range(4):
                e(f"  v_add_f32 v{t+8+i}, 1.0, v{t+8+i}")
            for i in range(4):
                e(f"  v_rcp_f32 v{t+8+i}, v{t+8+i}")
            for i in range(4):
                e(f"  v_mul_f32 v{t+8+i}, v{t+i}, v{t+8+i}")
            e(f"  v_cvt_pk_bf16_f32 v{t+12}, v{t+8}, v{t+9}")
            e(f"  v_cvt_pk_bf16_f32 v{t+13}, v{t+10}, v{t+11}")
            for p in range(2):
                e(f"  v_lshlrev_b32 v{t+8+2*p}, 16, v{t+12+p}")
                e(f"  v_and_b32 v{t+8+2*p+1}, s51, v{t+12+p}")
            for i in range(4):
                e(f"  v_mul_f32 v{t+8+i}, v{t+8+i}, v{t+4+i}")
            e(f"  v_cvt_pk_bf16_f32 v{t+16}, v{t+8}, v{t+9}")
            e(f"  v_cvt_pk_bf16_f32 v{t+17}, v{t+10}, v{t+11}")
            e(f"  buffer_store_dwordx2 v[{t+16}:{t+17}], v{26+mi}, s[16:19], 0 offen offset:{ni*32}")
    if STAMP:
        e("  s_waitcnt vmcnt(0)")
    stamp()
    stamp_out(WGSEL1)
    e("L_k1_end:")
    e("  s_endpgm")


NS2 = 4
ST2 = 10240
WREG2 = NS2 * ST2
LDS2 = 4 * WREG2
NSTAGE2 = 896 // 64


def k2():
    del VM[:]
    assert LA2 <= NS2
    e(".globl ffn_down_kernel")
    e(".p2align 8")
    e(".type ffn_down_kernel,@function")
    e("ffn_down_kernel:")
    stamp()
    e("  s_cmp_ge_u32 s2, 256")
    e("  s_cbranch_scc1 L_k2_end")
    e("  s_load_dwordx4 s[24:27], s[0:1], 24")
    e("  s_load_dwordx2 s[28:29], s[0:1], 48")
    e("  s_and_b32 s32, s2, 7")
    e("  s_lshr_b32 s33, s2, 3")
    e("  s_lshr_b32 s34, s33, 1")
    e("  s_and_b32 s35, s33, 1")
    if MAP2:
        e("  s_lshl_b32 s36, s35, 3")
        e("  s_add_u32 s36, s36, s32")
    else:
        e("  s_lshl_b32 s36, s32, 1")
        e("  s_add_u32 s36, s36, s35")
    e("  s_lshl_b32 s37, s34, 4")
    e("  s_lshl_b32 s38, s36, 6")
    e("  v_and_b32 v1, 63, v0")
    e("  v_lshrrev_b32 v2, 6, v0")
    e("  v_lshrrev_b32 v3, 3, v1")
    e("  v_readfirstlane_b32 s39, v2")
    e("  v_and_b32 v4, 7, v1")
    e("  s_mul_i32 s40, s39, 896")
    e("  s_mul_i32 s52, s35, 7")
    e(f"  s_mul_i32 s53, s34, {ROTM2}")
    e("  s_add_u32 s52, s52, s53")
    e("  s_mul_hi_u32 s53, s52, 0x12492493")
    e("  s_mul_i32 s53, s53, 14")
    e("  s_sub_u32 s52, s52, s53")
    if not ROT:
        e("  s_mov_b32 s52, 0")
    e("  v_add_u32 v5, s37, v3")
    e("  s_movk_i32 s42, 7168")
    e("  v_mul_lo_u32 v5, v5, s42")
    e("  s_lshl_b32 s41, s40, 1")
    e("  v_add_u32 v5, s41, v5")
    e("  v_xor_b32 v6, v4, v3")
    e("  v_lshlrev_b32 v6, 4, v6")
    e("  v_add_u32 v10, v5, v6")
    e("  v_add_u32 v5, s40, v3")
    e("  v_lshlrev_b32 v5, 11, v5")
    e("  s_lshl_b32 s43, s38, 1")
    e("  v_add_u32 v5, s43, v5")
    e("  v_and_b32 v6, 3, v3")
    e("  v_xor_b32 v7, v4, v6")
    e("  v_lshlrev_b32 v7, 4, v7")
    e("  v_add_u32 v11, v5, v7")
    e("  v_xor_b32 v7, 4, v6")
    e("  v_xor_b32 v7, v4, v7")
    e("  v_lshlrev_b32 v7, 4, v7")
    e("  v_add_u32 v12, v5, v7")
    e(f"  s_mul_i32 s44, s39, {WREG2}")
    e("  s_waitcnt lgkmcnt(0)")
    srd(4, 28, H_BYTES)
    srd(8, 24, W_BYTES)

    def issue(stage):
        sb = (stage % NS2) * ST2
        e(f"  s_add_u32 s53, s52, {stage}")
        e("  s_cmp_ge_u32 s53, 28")
        e("  s_cselect_b32 s54, 28, 0")
        e("  s_sub_u32 s53, s53, s54")
        e("  s_cmp_ge_u32 s53, 14")
        e("  s_cselect_b32 s54, 14, 0")
        e("  s_sub_u32 s53, s53, s54")
        e("  s_lshl_b32 s54, s53, 7")
        e("  s_lshl_b32 s55, s53, 17")
        for i in range(2):
            e(f"  s_add_u32 s48, s54, {i*8*7168}")
            e(f"  s_add_u32 m0, s44, {sb + i*1024}")
            e("  s_nop 0")
            e("  buffer_load_dwordx4 v10, s[4:7], s48 offen lds")
            vm_issue(("st", stage))
        for i in range(8):
            e(f"  s_add_u32 s48, s55, {8*i*2048}")
            e(f"  s_add_u32 m0, s44, {sb + 2048 + i*1024}")
            e("  s_nop 0")
            e(f"  buffer_load_dwordx4 v{11 + (i & 1)}, s[8:11], s48 offen lds")
            vm_issue(("st", stage))

    stamp()
    issue(0)
    srd(16, 26, O_BYTES)
    e("  v_and_b32 v5, 15, v1")
    e("  v_lshlrev_b32 v5, 7, v5")
    e("  v_add_u32 v5, s44, v5")
    e("  v_lshrrev_b32 v6, 4, v1")
    e("  v_xor_b32 v7, v6, v4")
    e("  v_lshlrev_b32 v8, 4, v7")
    e("  v_add_u32 v14, v5, v8")
    e("  v_xor_b32 v7, 4, v7")
    e("  v_lshlrev_b32 v8, 4, v7")
    e("  v_add_u32 v15, v5, v8")
    e("  v_lshrrev_b32 v7, 2, v1")
    e("  v_and_b32 v7, 3, v7")
    e("  v_lshlrev_b32 v8, 3, v6")
    e("  v_add_u32 v8, v8, v7")
    e("  v_lshlrev_b32 v8, 7, v8")
    e("  v_and_b32 v9, 1, v1")
    e("  v_lshlrev_b32 v9, 3, v9")
    e("  v_add_u32 v8, v8, v9")
    e("  v_add_u32 v8, 2048, v8")
    e("  v_add_u32 v8, s44, v8")
    e("  v_and_b32 v9, 1, v6")
    e("  v_lshlrev_b32 v9, 2, v9")
    e("  v_or_b32 v9, v9, v7")
    e("  v_lshrrev_b32 v5, 1, v1")
    e("  v_and_b32 v5, 1, v5")
    for ni in range(4):
        if ni:
            e("  v_add_u32 v5, 2, v5")
        e("  v_xor_b32 v7, v5, v9")
        e("  v_lshlrev_b32 v7, 4, v7")
        e(f"  v_add_u32 v{16+ni}, v8, v7")
    for i in range(16):
        e(f"  v_mov_b32 v{32+i}, 0")

    def acc(ni):
        return 32 + ni * 4

    def xf(fs, ks):
        return 64 + fs * 40 + ks * 20

    def wf(fs, ks, ni):
        return 64 + fs * 40 + ks * 20 + 4 + ni * 4

    def reads(stage):
        sb = (stage % NS2) * ST2
        fs = stage % 2
        for ks in range(2):
            bb = xf(fs, ks)
            e(f"  ds_read_b128 v[{bb}:{bb+3}], v{14+ks} offset:{sb}")
            for ni in range(4):
                bb = wf(fs, ks, ni)
                for hf in range(2):
                    e(f"  ds_read_b64_tr_b16 v[{bb+2*hf}:{bb+2*hf+1}], v{16+ni} offset:{sb + ks*4096 + hf*512}")

    for st in range(1, LI2):
        issue(st)
    if PFH2:
        e("  v_and_b32 v5, 15, v1")
        e("  v_add_u32 v5, s37, v5")
        e("  v_mul_lo_u32 v5, v5, s42")
        e("  v_lshrrev_b32 v6, 4, v1")
        e("  v_lshlrev_b32 v6, 7, v6")
        e("  v_add_u32 v5, v5, v6")
        e("  s_mul_i32 s45, s39, 14")
        e("  s_mul_i32 s46, s35, 7")
        e("  s_add_u32 s45, s45, s46")
        e("  s_lshl_b32 s45, s45, 7")
        e("  v_add_u32 v28, s45, v5")
        e("  buffer_load_dword v30, v28, s[4:7], 0 offen")
        vm_issue("pf")
        e("  buffer_load_dword v31, v28, s[4:7], 0 offen offset:384")
        vm_issue("pf")
    nxt = LI2
    stamp()
    e(f"  s_waitcnt vmcnt({vm_wait_for(('st', 0))})")
    reads(0)
    for s in range(NSTAGE2):
        fill = []
        if s + 1 < NSTAGE2:
            e(f"  s_waitcnt vmcnt({vm_wait_for(('st', s + 1))}) lgkmcnt(0)")
            if s in (0, 1, 2, 4, 8, 12):
                stamp()
            dg = []
            cnt = 0
            while nxt < NSTAGE2 and nxt <= s + LA2 and cnt < 2:
                dg += split_groups(capture(issue, nxt), "buffer_load")
                nxt += 1
                cnt += 1
            rg = [[ln] for ln in capture(reads, s + 1)]
            fill = merge(rg, dg)
        else:
            e("  s_waitcnt lgkmcnt(0)")
        fs = s % 2
        mf = []
        for ks in range(2):
            for ni in range(4):
                ac = acc(ni)
                w = wf(fs, ks, ni)
                x = xf(fs, ks)
                mf.append(f"  v_mfma_f32_16x16x32_bf16 v[{ac}:{ac+3}], v[{w}:{w+3}], v[{x}:{x+3}], v[{ac}:{ac+3}]")
        interleave(mf, fill)
    stamp()
    e("  v_lshlrev_b32 v18, 4, v1")
    e("  v_add_u32 v19, s44, v18")
    e("  s_lshl_b32 s45, s39, 10")
    e("  v_add_u32 v20, s45, v18")
    e(f"  v_add_u32 v21, {2*WREG2}, v20")
    e("  v_and_b32 v5, 15, v1")
    e("  v_add_u32 v5, s37, v5")
    e("  v_lshlrev_b32 v5, 11, v5")
    e("  s_lshl_b32 s46, s39, 5")
    e("  s_add_u32 s46, s46, s43")
    e("  v_lshrrev_b32 v6, 4, v1")
    e("  v_lshlrev_b32 v6, 3, v6")
    e("  v_add_u32 v6, s46, v6")
    e("  v_add_u32 v5, v5, v6")
    e("  s_nop 7")
    for t in range(4):
        a = 32 + t * 4
        e(f"  ds_write_b128 v19, v[{a}:{a+3}] offset:{t*1024}")
    e("  s_waitcnt lgkmcnt(0)")
    e("  s_barrier")
    for r in range(2):
        e(f"  ds_read_b128 v[{64+4*r}:{67+4*r}], v20 offset:{r*WREG2}")
    for r in range(2):
        e(f"  ds_read_b128 v[{72+4*r}:{75+4*r}], v21 offset:{r*WREG2}")
    e("  s_waitcnt lgkmcnt(0)")
    for i in range(4):
        e(f"  v_add_f32 v{64+i}, v{64+i}, v{68+i}")
        e(f"  v_add_f32 v{72+i}, v{72+i}, v{76+i}")
    for i in range(4):
        e(f"  v_add_f32 v{64+i}, v{64+i}, v{72+i}")
    e("  v_cvt_pk_bf16_f32 v80, v64, v65")
    e("  v_cvt_pk_bf16_f32 v81, v66, v67")
    e("  buffer_store_dwordx2 v[80:81], v5, s[16:19], 0 offen")
    if STAMP:
        e("  s_waitcnt vmcnt(0)")
    stamp()
    stamp_out(WGSEL2)
    e("L_k2_end:")
    e("  s_endpgm")


def kd(name, nv, ns):
    acc_off = ((nv + 3) // 4) * 4
    e(f".amdhsa_kernel {name}")
    e(f"  .amdhsa_next_free_vgpr {nv}")
    e(f"  .amdhsa_next_free_sgpr {ns}")
    e(f"  .amdhsa_accum_offset {acc_off}")
    e("  .amdhsa_group_segment_fixed_size 0")
    e("  .amdhsa_kernarg_size 56")
    e("  .amdhsa_user_sgpr_count 2")
    e("  .amdhsa_user_sgpr_kernarg_segment_ptr 1")
    e("  .amdhsa_system_sgpr_workgroup_id_x 1")
    e(".end_amdhsa_kernel")


L.append(HEADER % (LDS1, LDS2))
k1()
k2()
e('.section .rodata,"a"')
e(".p2align 6")
kd("ffn_up_kernel", 248 if STAMP else 160, 102 if STAMP else 64)
e(".p2align 6")
kd("ffn_down_kernel", 248 if STAMP else 144, 102 if STAMP else 64)
open(OUT, "w").write("\n".join(L) + "\n")
print("wrote", OUT, len(L), "lines")
```
